```python
import torch

def _softmax(x, axis=-1):
    return torch.softmax(x, dim=axis)
def _gelu(x):
    return torch.nn.functional.gelu(x, approximate="tanh")
def _silu(x):
    return torch.nn.functional.silu(x)
def _sigmoid(x):
    return torch.sigmoid(x)
def _layernorm(x, axis=-1, eps=1e-5):
    m = x.mean(dim=axis, keepdim=True)
    v = x.var(dim=axis, keepdim=True, unbiased=False)
    return (x - m) / torch.sqrt(v + eps)
def _scatter_add(tgt, idx, src, axis=0):
    return tgt.clone().index_add_(axis, idx, src)
def _segment_sum(src, seg, n):
    out = torch.zeros((n,) + src.shape[1:], dtype=src.dtype)
    return out.index_add_(0, seg, src)
def _pad(x, pw):
    flat = tuple(v for pair in reversed(pw) for v in pair)
    return torch.nn.functional.pad(x, flat)

kernel_name = 'recurrent_scan__mha_block_cached__dense_activation_gelu__decode'

def setup_inputs():

    _w = (lambda a: (lambda t: t.to(torch.bfloat16) if t.is_floating_point() else t)(torch.as_tensor(a)))
    def _A_setup():
        B, Sq, D = 8, 1, 576
        H, Sk, Dh = 32, 4096, 128
        return {
            "x": _w((lambda *s: torch.randn(*s, dtype=torch.bfloat16) * 0.05)(B, Sq, D)),
            "k_cache": _w((lambda *s: torch.randn(*s, dtype=torch.bfloat16) * 3.2)(B, H, Sk, Dh)),
            "v_cache": _w((lambda *s: torch.randn(*s, dtype=torch.bfloat16) * 3.2)(B, H, Sk, Dh)),
            "wq": _w((lambda *s: torch.randn(*s, dtype=torch.bfloat16) * 3.2)(D, H * Dh) * (D ** -0.5)),
            "wo": _w((lambda *s: torch.randn(*s, dtype=torch.bfloat16) * 3.2)(H * Dh, D) * ((H * Dh) ** -0.5)),
        }
    _A_in = _A_setup()

    def _B_setup():
        B, S, D, F = 8, 1, 576, 4608
        return {
            "x": _w((lambda *s: torch.randn(*s, dtype=torch.bfloat16) * 0.05)(B, S, D)),
            "w1": _w((lambda *s: torch.randn(*s, dtype=torch.bfloat16) * 3.2)(D, F) * (D ** -0.5)),
            "b1": _w((lambda *s: torch.randn(*s, dtype=torch.bfloat16) * 3.2)(F) * 0.01),
            "w2": _w((lambda *s: torch.randn(*s, dtype=torch.bfloat16) * 0.4)(F, D) * (F ** -0.5)),
            "b2": _w((lambda *s: torch.randn(*s, dtype=torch.bfloat16) * 0.4)(D) * 0.01),
        }
    _B_in = _B_setup()

    return {
        "A_x": _A_in["x"],
        "A_k_cache": _A_in["k_cache"],
        "A_v_cache": _A_in["v_cache"],
        "A_wq": _A_in["wq"],
        "A_wo": _A_in["wo"],
        "B_x": _B_in["x"],
        "B_w1": _B_in["w1"],
        "B_b1": _B_in["b1"],
        "B_w2": _B_in["w2"],
        "B_b2": _B_in["b2"],
    }

def reference(A_x, A_k_cache, A_v_cache, A_wq, A_wo, B_x, B_w1, B_b1, B_w2, B_b2):
    def _A_ref(x, k_cache, v_cache, wq, wo):
        B, Sq, D = x.shape
        H, Dh = 32, 128
        q = (lambda x, *d: x.permute(*d))((x @ wq).reshape(B, Sq, H, Dh), 0, 2, 1, 3)
        scores = torch.einsum("bhqd,bhkd->bhqk", q, k_cache) * (Dh ** -0.5)
        p = _softmax(scores, axis=-1)
        o = torch.einsum("bhqk,bhkd->bhqd", p, v_cache)
        return (lambda x, *d: x.permute(*d))(o, 0, 2, 1, 3).reshape(B, Sq, H * Dh) @ wo

    def _B_ref(x, w1, b1, w2, b2):
        h = torch.einsum("bsd,df->bsf", x, w1) + b1
        h = _gelu(h)
        return torch.einsum("bsf,fd->bsd", h, w2) + b2

    x = A_x
    xn = _layernorm(x, axis=-1)
    s = _A_ref(xn, A_k_cache, A_v_cache, A_wq, A_wo)
    g = _silu(_B_ref(xn, B_w1, B_b1, B_w2, B_b2))
    return x + s * g
```

```python
import sys, struct

NAME = "recurrent_scan__mha_block_cached__dense_activation_gelu__decode"

def f32(x):
    return "0x%08x" % struct.unpack("<I", struct.pack("<f", x))[0]

DEFAULTS = dict(
    d_fill=6,
    d_k=5,
    d_klast=16,
    d_v=5,
    pol_kv="nt",
    pol_wq="",
    pol_wo="",
    pol_mlp="nt",
    stamps=0,
)

QP = 0
OT = 2048
OTS = 288
ST = 3328
XT = 4096
XTS = 1168
HT = XT + 8 * XTS
HTS = 272
LDS_BYTES = HT + 8 * HTS

P_OFF = 0
M_OFF = 0x100000
STAMP_OFF = 0x200000
NMLP = 36

sX, sK, sV, sWQ, sWO, sW1, sB1 = 8, 10, 12, 14, 16, 20, 22
sW2, sB2, sOUT, sDBG, sWS = 24, 26, 28, 30, 32
sWAVE, sB, sH, sHW = 3, 34, 35, 4
RA, RB, RC, RD, RE = 36, 40, 44, 48, 52
sOFF, sCNT, sT0, sT1, sT2 = 56, 57, 58, 59, 60
sODD, sBIT1 = 62, 64
sPLO, sPHI, sDLO, sDHI = 66, 67, 68, 69
sMSK = 70
sTS = 72
sSP = 74


class G:
    def __init__(self, **kw):
        self.o = dict(DEFAULTS)
        self.o.update(kw)
        self.L = []
        self.nstamp = 0

    def e(self, s):
        self.L.append("    " + s)

    def lab(self, s):
        self.L.append(s + ":")

    def c(self, s):
        self.L.append("    ; " + s)

    def srd(self, r, ptr, off_lo=None, off_hi=None, nrec=0):
        if off_lo is None:
            self.e(f"s_mov_b32 s{r}, s{ptr}")
            self.e(f"s_and_b32 s{r+1}, s{ptr+1}, 0xffff")
        else:
            self.e(f"s_add_u32 s{r}, s{ptr}, {off_lo}")
            self.e(f"s_addc_u32 s{r+1}, s{ptr+1}, {off_hi if off_hi else 0}")
            self.e(f"s_and_b32 s{r+1}, s{r+1}, 0xffff")
        self.e(f"s_mov_b32 s{r+2}, {nrec}")
        self.e(f"s_mov_b32 s{r+3}, 0x20000")

    def stamp(self, idx, vs):
        if not self.o["stamps"]:
            return
        self.e(f"s_memrealtime s[{sTS}:{sTS+1}]")
        self.e("s_waitcnt lgkmcnt(0)")
        self.e(f"v_writelane_b32 v{vs}, s{sTS}, {idx}")

    def stamp_flush(self, vs, vt):
        if not self.o["stamps"]:
            return
        self.e("s_mov_b64 exec, -1")
        self.e(f"s_getreg_b32 s{sT0}, hwreg(HW_REG_XCC_ID)")
        self.e(f"v_writelane_b32 v{vs}, s{sT0}, 31")
        self.e(f"s_lshl_b32 s{sT0}, s2, 3")
        self.e(f"s_add_u32 s{sT0}, s{sT0}, s{sWAVE}")
        self.e(f"s_lshl_b32 s{sT0}, s{sT0}, 7")
        self.e(f"s_add_u32 s{sT0}, s{sT0}, {STAMP_OFF}")
        self.e(f"v_lshlrev_b32 v{vt}, 2, v0")
        self.e(f"v_add_u32 v{vt}, s{sT0}, v{vt}")
        self.e("s_mov_b32 exec_hi, 0")
        self.e(f"global_store_dword v{vt}, v{vs}, s[{sWS}:{sWS+1}]")
        self.e("s_waitcnt vmcnt(0)")

    def allreduce(self, op, v, t, rows=True):
        for mod in ("quad_perm:[1,0,3,2]", "quad_perm:[2,3,0,1]", "row_half_mirror", "row_mirror"):
            self.e("s_nop 1")
            self.e(f"{op}_dpp v{v}, v{v}, v{v} {mod} row_mask:0xf bank_mask:0xf")
        if rows:
            for sw in ("v_permlane16_swap_b32", "v_permlane32_swap_b32"):
                self.e(f"v_mov_b32 v{t}, v{v}")
                self.e("s_nop 1")
                self.e(f"{sw} v{t}, v{v}")
                self.e("s_nop 1")
                self.e(f"{op} v{v}, v{v}, v{t}")

    def masks(self, vm, t0, t1):
        self.e(f"v_and_b32 v{t0}, 1, v0")
        self.e(f"v_lshlrev_b32 v{t0}, 4, v{t0}")
        self.e(f"v_mov_b32 v{t1}, 0xffff")
        self.e(f"v_lshlrev_b32 v{t0}, v{t0}, v{t1}")
        self.e(f"v_bfe_u32 v{t1}, v0, 1, 2")
        for r in range(4):
            self.e(f"v_cmp_eq_u32 vcc, {r}, v{t1}")
            self.e("s_nop 1")
            self.e(f"v_cndmask_b32 v{vm+r}, 0, v{t0}, vcc")

    def rbf(self, dst, src):
        self.e(f"v_cvt_pk_bf16_f32 v{dst}, v{src}, v{src}")
        self.e(f"v_and_b32 v{dst}, 0xffff0000, v{dst}")

    def streamer(self):
        o = self.o
        e = self.e
        vOFF, vQ, vM, vA, vACC, vPA, vPB, vT, vR0, vMX, vS, vP, vRING, vST = \
            1, 4, 8, 12, 20, 24, 25, 26, 27, 28, 32, 40, 128, 30
        R = 32
        pol = o["pol_kv"]

        def ring(n):
            return f"v[{vRING+4*n}:{vRING+4*n+3}]"

        def load(n, srd):
            e(f"buffer_load_dwordx4 {ring(n)}, v{vOFF}, s[{srd}:{srd+3}], s{sOFF} offen offset:{(n%4)*1024} {pol}")
            if n % 4 == 3:
                e(f"s_add_u32 s{sOFF}, s{sOFF}, 16384")

        self.lab("L_stream")
        if o["stamps"]:
            e(f"v_mov_b32 v{vST}, 0")
        self.stamp(0, vST)
        e(f"s_lshl_b32 s{sT0}, s2, 20")
        self.srd(RA, sK, f"s{sT0}", None, 1 << 20)
        e(f"s_lshl_b32 s{sT1}, s{sHW}, 12")
        e(f"v_lshlrev_b32 v{vOFF}, 4, v0")
        e(f"v_add_u32 v{vOFF}, s{sT1}, v{vOFF}")
        e(f"s_mov_b32 s{sOFF}, 0")
        for n in range(R):
            if n >= o["d_fill"]:
                e(f"s_waitcnt vmcnt({o['d_fill']-1})")
            load(n, RA)
            if n == o["d_fill"] - 1:
                self.srd(RB, sV, f"s{sT0}", None, 1 << 20)
                self.masks(vM, vT, vR0)
                e(f"s_mov_b32 s{sODD}, 0xaaaaaaaa")
                e(f"s_mov_b32 s{sODD+1}, 0xaaaaaaaa")
                e(f"s_mov_b32 s{sBIT1}, 0xcccccccc")
                e(f"s_mov_b32 s{sBIT1+1}, 0xcccccccc")
                e(f"s_mov_b32 s{sDLO}, 0x01000100")
                e(f"s_mov_b32 s{sDHI}, 0x03020302")
                e(f"v_and_b32 v2, 15, v0")
                e(f"v_lshlrev_b32 v2, 5, v2")
                for k in range(8):
                    e(f"v_mov_b32 v{vS+k}, 0")
        self.stamp(1, vST)
        e("s_barrier")
        self.stamp(2, vST)
        self.c("q = bf16(sum of the four helper partials), elements 8c..8c+7")
        for w in range(4):
            e(f"ds_read_b128 v[{vP+8*w}:{vP+8*w+3}], v2 offset:{QP+512*w}")
            e(f"ds_read_b128 v[{vP+8*w+4}:{vP+8*w+7}], v2 offset:{QP+512*w+16}")
        e("s_waitcnt lgkmcnt(0)")
        for k in range(8):
            e(f"v_add_f32 v{vP+k}, v{vP+k}, v{vP+8+k}")
            e(f"v_add_f32 v{vP+16+k}, v{vP+16+k}, v{vP+24+k}")
        for k in range(8):
            e(f"v_add_f32 v{vP+k}, v{vP+k}, v{vP+16+k}")
        for k in range(4):
            e(f"v_cvt_pk_bf16_f32 v{vQ+k}, v{vP+2*k}, v{vP+2*k+1}")

        def reduce16(dst):
            p = lambda j: f"v{vP+j}"
            full = "row_mask:0xf bank_mask:0xf"
            for m in range(8):
                a, b = p(2 * m), p(2 * m + 1)
                e(f"v_add_f32_dpp {a}, {a}, {a} row_ror:8 row_mask:0xf bank_mask:0x3")
                e(f"v_add_f32_dpp {a}, {b}, {b} row_ror:8 row_mask:0xf bank_mask:0xc")
            for m in range(4):
                a, b = p(4 * m), p(4 * m + 2)
                e(f"v_add_f32_dpp {a}, {a}, {a} row_shl:4 row_mask:0xf bank_mask:0x5")
                e(f"v_add_f32_dpp {a}, {b}, {b} row_shr:4 row_mask:0xf bank_mask:0xa")
            for j in (0, 4, 8):
                e(f"v_add_f32_dpp {p(j)}, {p(j)}, {p(j)} quad_perm:[1,0,3,2] {full}")
            e(f"v_add_f32_dpp {p(12)}, {p(12)}, {p(12)} quad_perm:[1,0,3,2] {full}")
            e(f"v_cndmask_b32 {p(0)}, {p(0)}, {p(4)}, s[{sODD}:{sODD+1}]")
            e(f"v_cndmask_b32 {p(8)}, {p(8)}, {p(12)}, s[{sODD}:{sODD+1}]")
            e("s_nop 0")
            e(f"v_add_f32_dpp {p(0)}, {p(0)}, {p(0)} quad_perm:[2,3,0,1] {full}")
            e(f"v_add_f32_dpp {p(8)}, {p(8)}, {p(8)} quad_perm:[2,3,0,1] {full}")
            e(f"v_cndmask_b32 v{dst}, {p(0)}, {p(8)}, s[{sBIT1}:{sBIT1+1}]")

        def kbody(d, srd):
            for n in range(R):
                j = n % 16
                e(f"s_waitcnt vmcnt({d-1})")
                b = vRING + 4 * n
                e(f"v_dot2_f32_bf16 v{vP+j}, v{b}, v{vQ}, 0")
                for k in range(1, 4):
                    e(f"v_dot2_f32_bf16 v{vP+j}, v{b+k}, v{vQ+k}, v{vP+j}")
                load(n, srd)
                if n == 15:
                    reduce16(vR0)
            reduce16(vP)
            self.c("scores: bf16(dot), times Dh^-0.5, bf16 again")
            e(f"v_cvt_pk_bf16_f32 v{vT}, v{vR0}, v{vP}")
            e(f"v_lshlrev_b32 v{vR0}, 16, v{vT}")
            e(f"v_and_b32 v{vT}, 0xffff0000, v{vT}")
            e(f"v_mul_f32 v{vR0}, {f32(128 ** -0.5)}, v{vR0}")
            e(f"v_mul_f32 v{vT}, {f32(128 ** -0.5)}, v{vT}")
            for k in range(7):
                e(f"v_mov_b32 v{vS+k}, v{vS+k+1}")
            e(f"v_cvt_pk_bf16_f32 v{vS+7}, v{vR0}, v{vT}")

        e(f"s_mov_b32 s{sCNT}, 7")
        self.lab("L_k")
        kbody(o["d_k"], RA)
        e(f"s_sub_u32 s{sCNT}, s{sCNT}, 1")
        e(f"s_cmp_lg_u32 s{sCNT}, 0")
        e("s_cbranch_scc1 L_k")
        self.stamp(3, vST)
        e(f"s_mov_b32 s{sOFF}, 0")
        kbody(o["d_klast"], RB)
        self.stamp(4, vST)
        self.c("softmax numerators against this wave's maximum")
        for k in range(8):
            e(f"v_lshlrev_b32 v{vP+2*k}, 16, v{vS+k}")
            e(f"v_and_b32 v{vP+2*k+1}, 0xffff0000, v{vS+k}")
        e(f"v_max_f32 v{vMX}, v{vP}, v{vP+1}")
        for k in range(1, 8):
            e(f"v_max3_f32 v{vMX}, v{vMX}, v{vP+2*k}, v{vP+2*k+1}")
        self.allreduce("v_max_f32", vMX, vT)
        for k in range(16):
            e(f"v_sub_f32 v{vP+k}, v{vP+k}, v{vMX}")
        for k in range(16):
            e(f"v_mul_f32 v{vP+k}, {f32(1.4426950408889634)}, v{vP+k}")
        for k in range(16):
            e(f"v_exp_f32 v{vP+k}, v{vP+k}")
        e("s_nop 0")
        for k in range(8):
            e(f"v_cvt_pk_bf16_f32 v{vS+k}, v{vP+2*k}, v{vP+2*k+1}")
        for k in range(8):
            e(f"v_add_f32 v{vP+k}, v{vP+k}, v{vP+8+k}")
        for k in range(4):
            e(f"v_add_f32 v{vP+k}, v{vP+k}, v{vP+4+k}")
        e(f"v_add_f32 v{vP}, v{vP}, v{vP+2}")
        e(f"v_add_f32 v{vP+1}, v{vP+1}, v{vP+3}")
        e(f"v_add_f32 v{vP}, v{vP}, v{vP+1}")
        self.allreduce("v_add_f32", vP, vT)
        e(f"s_lshl_b32 s{sT1}, s{sHW}, 2")
        e(f"v_mov_b32 v{vT}, s{sT1}")
        e(f"ds_write_b32 v{vT}, v{vMX} offset:{ST}")
        e(f"ds_write_b32 v{vT}, v{vP} offset:{ST+16}")
        for r in range(4):
            e(f"v_mov_b32 v{vACC+r}, 0")
        self.c("address of this wave's row in the o table")
        e(f"v_and_b32 v2, 15, v0")
        e(f"v_lshlrev_b32 v2, 4, v2")
        e(f"v_bfe_u32 v3, v0, 4, 1")
        e(f"v_lshl_add_u32 v2, v3, 3, v2")
        e(f"s_mul_i32 s{sT1}, s{sHW}, {OTS}")
        e(f"v_add_u32 v2, s{sT1}, v2")
        self.stamp(5, vST)

        def cof(j):
            return 8 * (j & 1) + 4 * ((j >> 1) & 1) + ((j >> 2) & 1) + 2 * ((j >> 3) & 1)

        def abuild(n):
            pp = vPA if n < 16 else vPB
            a = vA + 4 * (n & 1)
            for r in range(4):
                e(f"v_and_b32_dpp v{a+r}, v{pp}, v{vM+r} row_newbcast:{cof(n%16)} row_mask:0xf bank_mask:0xf")

        def vbody(d, drain):
            e(f"v_perm_b32 v{vPA}, v{vS}, v{vS}, s{sDLO}")
            e(f"v_perm_b32 v{vPB}, v{vS}, v{vS}, s{sDHI}")
            if not drain:
                for k in range(7):
                    e(f"v_mov_b32 v{vS+k}, v{vS+k+1}")
            else:
                e("s_nop 0")
            abuild(0)
            e("s_nop 0")
            for n in range(R):
                a = vA + 4 * (n & 1)
                e(f"s_waitcnt vmcnt({(R-1-n) if drain else d-1})")
                e(f"v_mfma_f32_16x16x32_bf16 v[{vACC}:{vACC+3}], v[{a}:{a+3}], {ring(n)}, v[{vACC}:{vACC+3}]")
                if n + 1 < R:
                    abuild(n + 1)
                if drain:
                    e("s_nop 0")
                else:
                    load(n, RB)

        e(f"s_mov_b32 s{sCNT}, 7")
        self.lab("L_v")
        vbody(o["d_v"], False)
        e(f"s_sub_u32 s{sCNT}, s{sCNT}, 1")
        e(f"s_cmp_lg_u32 s{sCNT}, 0")
        e("s_cbranch_scc1 L_v")
        self.stamp(6, vST)
        vbody(0, True)
        e("s_nop 7")
        e(f"v_cvt_pk_bf16_f32 v{vACC}, v{vACC}, v{vACC+1}")
        e(f"v_cvt_pk_bf16_f32 v{vACC+1}, v{vACC+2}, v{vACC+3}")
        e(f"ds_write_b64 v2, v[{vACC}:{vACC+1}] offset:{OT}")
        e("s_waitcnt lgkmcnt(0)")
        self.stamp(7, vST)
        e("s_barrier")
        self.stamp_flush(vST, vT)
        e("s_endpgm")

    def helper(self):
        o = self.o
        e = self.e
        vST = 31
        vS, vC = 1, 2
        vXO, vWO = 3, 4
        vM, vA, vACC = 8, 12, 20
        vT, vU, vMEAN, vVAR = 24, 25, 26, 27
        vX = 32
        vD = 44
        vW = 64
        self.lab("L_helper")
        if o["stamps"]:
            e(f"v_mov_b32 v{vST}, 0")
        self.stamp(0, vST)
        e(f"s_mul_i32 s{sT0}, s{sB}, 1152")
        self.srd(RA, sX, f"s{sT0}", None, 1152)
        e(f"s_lshl_b32 s{sT0}, s{sH}, 8")
        self.srd(RB, sWQ, f"s{sT0}", None, 0)
        e(f"s_sub_u32 s{RB+2}, {576*8192}, s{sT0}")
        e(f"v_lshrrev_b32 v{vS}, 4, v0")
        e(f"v_and_b32 v{vC}, 15, v0")
        self.c("x element of lane (s, c), register t: 64 t + 4 ((c + 4 hw) & 15) + s")
        e(f"s_lshl_b32 s{sT1}, s{sHW}, 2")
        e(f"v_add_u32 v{vXO}, s{sT1}, v{vC}")
        e(f"v_and_b32 v{vXO}, 15, v{vXO}")
        e(f"v_lshl_add_u32 v{vXO}, v{vXO}, 2, v{vS}")
        e(f"v_lshlrev_b32 v{vXO}, 1, v{vXO}")
        for t in range(9):
            e(f"buffer_load_ushort v{vX+t}, v{vXO}, s[{RA}:{RA+3}], 0 offen offset:{128*t}")
        e(f"v_lshlrev_b32 v{vWO}, 13, v{vS}")
        e(f"v_lshl_add_u32 v{vWO}, v{vC}, 4, v{vWO}")
        e(f"s_lshl_b32 s{sT1}, s{sHW}, 17")
        e(f"v_add_u32 v{vWO}, s{sT1}, v{vWO}")
        for n in range(36):
            t, cc = divmod(n, 4)
            e(f"s_mov_b32 s{sOFF}, {(64*t+4*cc)*8192}")
            e(f"buffer_load_dwordx4 v[{vW+4*n}:{vW+4*n+3}], v{vWO}, s[{RB}:{RB+3}], s{sOFF} offen {o['pol_wq']}")
        self.masks(vM, vT, vU)
        e(f"s_mov_b32 s{sPLO}, 0x05040100")
        e(f"s_mov_b32 s{sPHI}, 0x07060302")
        e("s_waitcnt vmcnt(36)")
        self.stamp(1, vST)
        self.c("layer norm of row b")
        for t in range(9):
            e(f"v_lshlrev_b32 v{vX+t}, 16, v{vX+t}")
        e(f"v_add_f32 v{vMEAN}, v{vX}, v{vX+1}")
        for t in range(2, 9):
            e(f"v_add_f32 v{vMEAN}, v{vMEAN}, v{vX+t}")
        self.allreduce("v_add_f32", vMEAN, vT)
        e(f"v_mul_f32 v{vMEAN}, {f32(1/576)}, v{vMEAN}")
        for t in range(9):
            e(f"v_sub_f32 v{vD+t}, v{vX+t}, v{vMEAN}")
        e(f"v_mul_f32 v{vVAR}, v{vD}, v{vD}")
        for t in range(1, 9):
            e(f"v_fmac_f32 v{vVAR}, v{vD+t}, v{vD+t}")
        self.allreduce("v_add_f32", vVAR, vT)
        self.ln_finish(vMEAN, vVAR, vT)
        for t in range(9):
            e(f"v_sub_f32 v{vD+t}, v{vX+t}, v{vMEAN}")
        for t in range(9):
            e(f"v_cvt_pk_bf16_f32 v{vD+t}, v{vD+t}, v{vD+t}")
        for t in range(9):
            e(f"v_and_b32 v{vD+t}, 0xffff0000, v{vD+t}")
        for t in range(9):
            self.divide(vX + t, vD + t, vVAR, vT, vU)
        for t in range(9):
            e(f"v_cvt_pk_bf16_f32 v{vX+t}, v{vX+t}, v{vX+t}")
        for r in range(4):
            e(f"v_mov_b32 v{vACC+r}, 0")
        self.stamp(2, vST)

        def abuild(n):
            t, cc = divmod(n, 4)
            a = vA + 4 * (n & 1)
            for r in range(4):
                e(f"v_and_b32_dpp v{a+r}, v{vX+t}, v{vM+r} row_newbcast:{cc} row_mask:0xf bank_mask:0xf")
        abuild(0)
        for n in range(36):
            a = vA + 4 * (n & 1)
            if n + 1 < 36:
                abuild(n + 1)
            else:
                e(f"v_and_b32 v{vT}, 1, v{vS}")
                e(f"v_lshlrev_b32 v{vT}, 4, v{vT}")
                e(f"v_lshl_add_u32 v{vT}, v{vC}, 5, v{vT}")
                e(f"s_lshl_b32 s{sT1}, s{sHW}, 9")
                e(f"v_add_u32 v{vT}, s{sT1}, v{vT}")
            e(f"s_waitcnt vmcnt({35-n})")
            e(f"v_mfma_f32_16x16x32_bf16 v[{vACC}:{vACC+3}], v[{a}:{a+3}], v[{vW+4*n}:{vW+4*n+3}], v[{vACC}:{vACC+3}]")
        e("s_nop 7")
        e(f"ds_write_b128 v{vT}, v[{vACC}:{vACC+3}] offset:{QP}")
        e("s_waitcnt lgkmcnt(0)")
        self.stamp(3, vST)
        e("s_barrier")
        self.stamp(4, vST)

        self.c("descriptors for the hand-off buffers")
        self.srd(RD, sWS, P_OFF, None, 256 * 2304)
        self.srd(RE, sDBG, None, None, 256)
        vPO, vPO2 = 5, 6
        self.c("publish offsets: 512-B main region (lanes 0-31), 64-B tail region (lanes 0-15)")
        e(f"s_mul_i32 s{sT0}, s2, 2304")
        e(f"s_lshl_b32 s{sT1}, s{sHW}, 9")
        e(f"s_add_u32 s{sT1}, s{sT1}, s{sT0}")
        e(f"v_lshlrev_b32 v{vPO}, 4, v0")
        e(f"v_add_u32 v{vPO}, s{sT1}, v{vPO}")
        e(f"s_lshl_b32 s{sT1}, s{sHW}, 6")
        e(f"s_add_u32 s{sT1}, s{sT1}, s{sT0}")
        e(f"s_add_u32 s{sT1}, s{sT1}, 2048")
        e(f"v_lshlrev_b32 v{vPO2}, 2, v0")
        e(f"v_add_u32 v{vPO2}, s{sT1}, v{vPO2}")
        self.c("mark this wave's slots empty, then count the wave in")
        for r in range(4):
            e(f"v_mov_b32 v{vACC+r}, -1")
        e(f"v_mov_b32 v{vT}, 1")
        e(f"s_lshl_b32 s{sT1}, s{sB}, 2")
        e("s_mov_b32 exec_hi, 0")
        e(f"buffer_store_dwordx4 v[{vACC}:{vACC+3}], v{vPO}, s[{RD}:{RD+3}], 0 offen sc1")
        e("s_mov_b32 exec_lo, 0xffff")
        e(f"buffer_store_dword v{vACC}, v{vPO2}, s[{RD}:{RD+3}], 0 offen sc1")
        e("s_waitcnt vmcnt(0)")
        e("s_mov_b64 exec, 1")
        e(f"buffer_atomic_add v{vT}, off, s[{RE}:{RE+3}], s{sT1} sc1")
        e("s_mov_b64 exec, -1")

        e(f"s_cmp_lg_u32 s{sHW}, 3")
        e("s_cbranch_scc1 L_nomlp")
        e(f"s_cmp_ge_u32 s2, {NMLP}")
        e("s_cbranch_scc1 L_nomlp")
        self.mlp(vS, vC)
        self.lab("L_nomlp")
        self.stamp(5, vST)

        self.c("wo rows of head h, columns 144 hw .. +144, as B fragments")
        vF = 112
        vL, vL2 = 64, 96
        vO1, vO2 = 3, 4
        e(f"s_mul_i32 s{sT0}, s{sH}, {128*1152}")
        self.srd(RB, sWO, f"s{sT0}", None, 128 * 1152)
        e(f"v_mul_u32_u24 v{vO1}, 9216, v{vS}")
        e(f"s_mul_i32 s{sT1}, s{sHW}, 288")
        e(f"v_add_u32 v{vO1}, s{sT1}, v{vO1}")
        e(f"v_lshl_add_u32 v{vO2}, v{vC}, 1, v{vO1}")
        e(f"v_add_u32 v{vO2}, 256, v{vO2}")
        e(f"v_lshl_add_u32 v{vO1}, v{vC}, 4, v{vO1}")
        for kb in range(4):
            for ee in range(8):
                if ee % 4 == 0:
                    e(f"s_mov_b32 s{sOFF}, {(32*kb+ee)*1152}")
                e(f"buffer_load_dwordx4 v[{vL+4*ee}:{vL+4*ee+3}], v{vO1}, s[{RB}:{RB+3}], s{sOFF} offen offset:{(ee%4)*1152} {o['pol_wo']}")
                e(f"buffer_load_ushort v{vL2+ee}, v{vO2}, s[{RB}:{RB+3}], s{sOFF} offen offset:{(ee%4)*1152} {o['pol_wo']}")
            e("s_waitcnt vmcnt(0)")
            self.transpose(vF + 36 * kb, vL)
            for r in range(4):
                e(f"v_perm_b32 v{vF+36*kb+32+r}, v{vL2+2*r+1}, v{vL2+2*r}, s{sPLO}")
        self.stamp(6, vST)

        vG, vXV, vCOL, vPL = 7, 8, 9, 10
        e(f"s_cmp_lg_u32 s{sHW}, 0")
        e("s_cbranch_scc1 L_nopre")
        e(f"s_cmp_ge_u32 s{sH}, 18")
        e("s_cbranch_scc1 L_nopre")
        self.consumer_pre(vG, vXV, vCOL, vPL)
        self.lab("L_nopre")
        self.stamp(7, vST)

        vAO, vZ = 3, 4
        vAF = 64
        vMM, vLL = 80, 84
        vAC = 32
        vAC9 = 20
        vVAL = 88
        e(f"v_and_b32 v{vAO}, 3, v0")
        e(f"v_mul_u32_u24 v{vAO}, {OTS}, v{vAO}")
        e(f"v_lshl_add_u32 v{vAO}, v{vS}, 4, v{vAO}")
        e(f"v_mov_b32 v{vZ}, 0")
        e("s_mov_b32 vcc_lo, 0xffff0000")
        e("s_mov_b32 vcc_hi, 0xffff0000")
        e("s_barrier")
        self.stamp(8, vST)
        e(f"ds_read_b128 v[{vAF}:{vAF+3}], v{vAO} offset:{OT}")
        e(f"ds_read_b128 v[{vMM}:{vMM+3}], v{vZ} offset:{ST}")
        e(f"ds_read_b128 v[{vLL}:{vLL+3}], v{vZ} offset:{ST+16}")
        for kb in range(1, 4):
            e(f"ds_read_b128 v[{vAF+4*kb}:{vAF+4*kb+3}], v{vAO} offset:{OT+64*kb}")
        acc = lambda u: (vAC + 4 * u) if u < 8 else vAC9
        fill = []
        fill.append(f"v_max_f32 v{vT}, v{vMM}, v{vMM+1}")
        fill.append(f"v_max3_f32 v{vT}, v{vT}, v{vMM+2}, v{vMM+3}")
        for r in range(4):
            fill.append(f"v_sub_f32 v{vMM+r}, v{vMM+r}, v{vT}")
        for r in range(4):
            fill.append(f"v_mul_f32 v{vMM+r}, {f32(1.4426950408889634)}, v{vMM+r}")
        for r in range(4):
            fill.append(f"v_exp_f32 v{vMM+r}, v{vMM+r}")
        fill.append(f"v_mul_f32 v{vT}, v{vMM}, v{vLL}")
        for r in range(1, 4):
            fill.append(f"v_fmac_f32 v{vT}, v{vMM+r}, v{vLL+r}")
        fill.append(f"v_rcp_f32 v{vT}, v{vT}")
        fill.append("s_nop 0")
        for r in range(4):
            fill.append(f"v_mul_f32 v{vMM+r}, v{vMM+r}, v{vT}")
        for kb in range(4):
            e(f"s_waitcnt lgkmcnt({[5,2,1,0][kb]})")
            for u in range(9):
                a = acc(u)
                cin = "0" if kb == 0 else f"v[{a}:{a+3}]"
                f = vF + 36 * kb + 4 * u
                e(f"v_mfma_f32_16x16x32_bf16 v[{a}:{a+3}], v[{vAF+4*kb}:{vAF+4*kb+3}], v[{f}:{f+3}], {cin}")
                if kb >= 1 and fill:
                    e(fill.pop(0))
        assert not fill
        self.c("rows r of each result belong to streamer r; lanes 16-31 keep columns u = 4..7")
        e("s_nop 3")
        for k in range(4):
            for r in range(4):
                e(f"v_cndmask_b32 v{acc(k)+r}, v{acc(k)+r}, v{acc(4+k)+r}, vcc")
        for k in range(4):
            e(f"v_mul_f32 v{vVAL+k}, v{acc(k)}, v{vMM}")
        e(f"v_mul_f32 v{vVAL+4}, v{vAC9}, v{vMM}")
        for r in range(1, 4):
            for k in range(4):
                e(f"v_fmac_f32 v{vVAL+k}, v{acc(k)+r}, v{vMM+r}")
            e(f"v_fmac_f32 v{vVAL+4}, v{vAC9+r}, v{vMM+r}")
        e("s_mov_b32 exec_hi, 0")
        e(f"buffer_store_dwordx4 v[{vVAL}:{vVAL+3}], v{vPO}, s[{RD}:{RD+3}], 0 offen sc1")
        e("s_mov_b32 exec_lo, 0xffff")
        e(f"buffer_store_dword v{vVAL+4}, v{vPO2}, s[{RD}:{RD+3}], 0 offen sc1")
        e("s_mov_b64 exec, -1")
        self.stamp(9, vST)
        e(f"s_cmp_lg_u32 s{sHW}, 0")
        e("s_cbranch_scc1 L_hend")
        e(f"s_cmp_ge_u32 s{sH}, 18")
        e("s_cbranch_scc1 L_hend")
        self.consumer_final(vG, vXV, vCOL, vPL)
        self.lab("L_hend")
        self.stamp(10, vST)
        self.stamp_flush(vST, vT)
        e("s_endpgm")

    def ln_finish(self, vMEAN, vVAR, vT):
        e = self.e
        e(f"v_mul_f32 v{vVAR}, {f32(1/576)}, v{vVAR}")
        self.rbf(vMEAN, vMEAN)
        self.rbf(vVAR, vVAR)
        e(f"v_add_f32 v{vVAR}, {f32(1e-5)}, v{vVAR}")
        self.rbf(vVAR, vVAR)
        e(f"v_sqrt_f32 v{vVAR}, v{vVAR}")
        e("s_nop 0")
        self.rbf(vVAR, vVAR)
        e(f"v_rcp_f32 v{vT}, v{vVAR}")
        e("s_nop 0")

    def divide(self, dst, num, den, rcp, tmp):
        e = self.e
        e(f"v_mul_f32 v{dst}, v{num}, v{rcp}")
        e(f"v_fma_f32 v{tmp}, -v{dst}, v{den}, v{num}")
        e(f"v_fmac_f32 v{dst}, v{tmp}, v{rcp}")

    def transpose(self, dst, src):
        for m in range(4):
            for r in range(4):
                lo, hi = src + 8 * r + m, src + 8 * r + 4 + m
                self.e(f"v_perm_b32 v{dst+8*m+r}, v{hi}, v{lo}, s{sPLO}")
                self.e(f"v_perm_b32 v{dst+8*m+4+r}, v{hi}, v{lo}, s{sPHI}")

    def sigmoid_mul(self, dst, x, arg, t):
        e = self.e
        e(f"v_exp_f32 v{t}, v{arg}")
        e("s_nop 0")
        e(f"v_add_f32 v{t}, 1.0, v{t}")
        e(f"v_rcp_f32 v{t}, v{t}")
        e("s_nop 0")
        e(f"v_mul_f32 v{dst}, v{x}, v{t}")

    def mlp(self, vS, vC):
        o = self.o
        e = self.e
        pol = o["pol_mlp"]
        vT, vU, vMEAN, vVAR, vV, vW = 24, 25, 26, 27, 28, 29
        vO, vLA, vB1 = 3, 4, 8
        vX = 64
        vL = [64, 96]
        vF = 128
        vAC = 160
        vAF = 192
        vOUT = 208
        self.c("layer norm of all rows: lane l holds row l >> 3, chunks (l & 7) + 8 t")
        self.srd(RA, sX, None, None, 8 * 1152)
        e(f"v_lshrrev_b32 v{vT}, 3, v0")
        e(f"v_and_b32 v{vU}, 7, v0")
        e(f"v_lshlrev_b32 v{vU}, 4, v{vU}")
        e(f"v_mul_u32_u24 v{vO}, 1152, v{vT}")
        e(f"v_add_u32 v{vO}, v{vO}, v{vU}")
        e(f"v_mul_u32_u24 v{vLA}, {XTS}, v{vT}")
        e(f"v_add_u32 v{vLA}, v{vLA}, v{vU}")
        for t in range(9):
            e(f"buffer_load_dwordx4 v[{vX+4*t}:{vX+4*t+3}], v{vO}, s[{RA}:{RA+3}], 0 offen offset:{128*t}")
        e(f"s_lshl_b32 s{sT0}, s2, 8")
        self.srd(RA, sB1, f"s{sT0}", None, 256)
        e(f"v_lshlrev_b32 v{vU}, 4, v{vC}")
        e(f"buffer_load_dwordx4 v[{vB1}:{vB1+3}], v{vU}, s[{RA}:{RA+3}], 0 offen")
        e(f"v_mov_b32 v{vMEAN}, 0")
        e(f"v_mov_b32 v{vVAR}, 0")
        e("s_waitcnt vmcnt(1)")
        for k in range(36):
            e(f"v_lshlrev_b32 v{vT}, 16, v{vX+k}")
            e(f"v_and_b32 v{vU}, 0xffff0000, v{vX+k}")
            e(f"v_add_f32 v{vMEAN}, v{vMEAN}, v{vT}")
            e(f"v_add_f32 v{vVAR}, v{vVAR}, v{vU}")
        e(f"v_add_f32 v{vMEAN}, v{vMEAN}, v{vVAR}")

        def red8(v):
            for mod in ("quad_perm:[1,0,3,2]", "quad_perm:[2,3,0,1]", "row_half_mirror"):
                e("s_nop 1")
                e(f"v_add_f32_dpp v{v}, v{v}, v{v} {mod} row_mask:0xf bank_mask:0xf")
        red8(vMEAN)
        e(f"v_mul_f32 v{vMEAN}, {f32(1/576)}, v{vMEAN}")
        e(f"v_mov_b32 v{vVAR}, 0")
        for k in range(36):
            e(f"v_lshlrev_b32 v{vT}, 16, v{vX+k}")
            e(f"v_and_b32 v{vU}, 0xffff0000, v{vX+k}")
            e(f"v_sub_f32 v{vT}, v{vT}, v{vMEAN}")
            e(f"v_sub_f32 v{vU}, v{vU}, v{vMEAN}")
            e(f"v_fmac_f32 v{vVAR}, v{vT}, v{vT}")
            e(f"v_fmac_f32 v{vVAR}, v{vU}, v{vU}")
        red8(vVAR)
        vRC = 30
        self.ln_finish(vMEAN, vVAR, vRC)
        for k in range(36):
            e(f"v_lshlrev_b32 v{vT}, 16, v{vX+k}")
            e(f"v_and_b32 v{vU}, 0xffff0000, v{vX+k}")
            e(f"v_sub_f32 v{vT}, v{vT}, v{vMEAN}")
            e(f"v_sub_f32 v{vU}, v{vU}, v{vMEAN}")
            e(f"v_cvt_pk_bf16_f32 v{vU}, v{vT}, v{vU}")
            e(f"v_lshlrev_b32 v{vT}, 16, v{vU}")
            e(f"v_and_b32 v{vU}, 0xffff0000, v{vU}")
            self.divide(vV, vT, vVAR, vRC, vW)
            self.divide(vT, vU, vVAR, vRC, vW)
            e(f"v_cvt_pk_bf16_f32 v{vX+k}, v{vV}, v{vT}")
        for t in range(9):
            e(f"ds_write_b128 v{vLA}, v[{vX+4*t}:{vX+4*t+3}] offset:{XT+128*t}")
        e("s_waitcnt lgkmcnt(0)")

        self.c("h = xn @ w1[:, 128 f .. +128]")
        e(f"s_lshl_b32 s{sT0}, s2, 8")
        self.srd(RA, sW1, f"s{sT0}", None, 0)
        e(f"s_sub_u32 s{RA+2}, {576*9216}, s{sT0}")
        e(f"v_mul_u32_u24 v{vO}, {8*9216}, v{vS}")
        e(f"v_lshl_add_u32 v{vO}, v{vC}, 4, v{vO}")
        e(f"v_and_b32 v{vLA}, 7, v0")
        e(f"v_mul_u32_u24 v{vLA}, {XTS}, v{vLA}")
        e(f"v_lshl_add_u32 v{vLA}, v{vS}, 4, v{vLA}")
        for k in range(32):
            e(f"v_mov_b32 v{vAC+k}, 0")

        def loads1(buf):
            for ee in range(8):
                e(f"buffer_load_dwordx4 v[{vL[buf]+4*ee}:{vL[buf]+4*ee+3}], v{vO}, s[{RA}:{RA+3}], s{sOFF} offen {pol}")
                e(f"s_add_u32 s{sOFF}, s{sOFF}, {9216 if ee < 7 else 25*9216}")

        def mmas(a, first=False):
            e("s_nop 0")
            for u in range(8):
                c = "0" if first else f"v[{vAC+4*u}:{vAC+4*u+3}]"
                e(f"v_mfma_f32_16x16x32_bf16 v[{vAC+4*u}:{vAC+4*u+3}], v[{a}:{a+3}], v[{vF+4*u}:{vF+4*u+3}], {c}")

        e(f"s_mov_b32 s{sOFF}, 0")
        loads1(0)
        e(f"s_mov_b32 s{sCNT}, 9")
        self.lab("L_g1")
        for half in range(2):
            loads1(1 - half)
            e(f"ds_read_b128 v[{vAF}:{vAF+3}], v{vLA} offset:{XT+64*half}")
            e("s_waitcnt vmcnt(8)")
            self.transpose(vF, vL[half])
            e("s_waitcnt lgkmcnt(0)")
            mmas(vAF)
        e(f"v_add_u32 v{vLA}, 128, v{vLA}")
        e(f"s_sub_u32 s{sCNT}, s{sCNT}, 1")
        e(f"s_cmp_lg_u32 s{sCNT}, 0")
        e("s_cbranch_scc1 L_g1")
        e("s_waitcnt vmcnt(0)")

        self.c("second matrix: rows 128 f .. +128 of w2, first block in flight under the activation")
        e(f"s_mul_i32 s{sT0}, s2, {128*1152}")
        self.srd(RA, sW2, f"s{sT0}", None, 128 * 1152)
        e(f"v_mul_u32_u24 v{vO}, 9216, v{vS}")
        e(f"v_lshl_add_u32 v{vO}, v{vC}, 4, v{vO}")

        def loads2(buf, kb):
            for ee in range(8):
                if ee % 4 == 0:
                    e(f"s_add_u32 s{sT1}, s{sOFF}, {(32*kb+ee)*1152}")
                e(f"buffer_load_dwordx4 v[{vL[buf]+4*ee}:{vL[buf]+4*ee+3}], v{vO}, s[{RA}:{RA+3}], s{sT1} offen offset:{(ee%4)*1152} {pol}")
        e(f"s_mov_b32 s{sOFF}, 0")
        loads2(0, 0)

        self.c("lanes 32-63 take columns u = 4..7; bias, gelu, store to the h table")
        e(f"s_mov_b32 s{sMSK}, 0")
        e(f"s_mov_b32 s{sMSK+1}, -1")
        for k in range(16):
            e(f"v_cndmask_b32 v{vAC+k}, v{vAC+k}, v{vAC+16+k}, s[{sMSK}:{sMSK+1}]")
        e(f"v_cndmask_b32 v{vB1}, v{vB1}, v{vB1+2}, s[{sMSK}:{sMSK+1}]")
        e(f"v_cndmask_b32 v{vB1+1}, v{vB1+1}, v{vB1+3}, s[{sMSK}:{sMSK+1}]")
        vBB = 12
        e(f"v_lshlrev_b32 v{vBB}, 16, v{vB1}")
        e(f"v_and_b32 v{vBB+1}, 0xffff0000, v{vB1}")
        e(f"v_lshlrev_b32 v{vBB+2}, 16, v{vB1+1}")
        e(f"v_and_b32 v{vBB+3}, 0xffff0000, v{vB1+1}")
        c1 = -2.0 * 0.7978845608028654 * 1.4426950408889634
        e(f"s_mov_b32 s{sT1}, {f32(c1)}")
        e(f"s_mov_b32 s{sT2}, {f32(c1 * 0.044715)}")
        e(f"v_mov_b32 v{vW}, s{sT1}")
        for u in range(4):
            for r in range(4):
                a = vAC + 4 * u + r
                self.rbf(a, a)
                e(f"v_add_f32 v{a}, v{a}, v{vBB+u}")
                self.rbf(a, a)
                e(f"v_mul_f32 v{vT}, v{a}, v{a}")
                e(f"v_fma_f32 v{vT}, v{vT}, s{sT2}, v{vW}")
                e(f"v_mul_f32 v{vT}, v{vT}, v{a}")
                self.sigmoid_mul(a, a, vT, vU)
        e(f"v_and_b32 v{vT}, 1, v{vS}")
        e(f"v_mul_u32_u24 v{vT}, {4*HTS}, v{vT}")
        e(f"v_lshl_add_u32 v{vT}, v{vC}, 4, v{vT}")
        e(f"v_lshrrev_b32 v{vU}, 1, v{vS}")
        e(f"v_lshl_add_u32 v{vT}, v{vU}, 3, v{vT}")
        for r in range(4):
            e(f"v_cvt_pk_bf16_f32 v{vOUT+2*r}, v{vAC+r}, v{vAC+4+r}")
            e(f"v_cvt_pk_bf16_f32 v{vOUT+2*r+1}, v{vAC+8+r}, v{vAC+12+r}")
            e(f"ds_write_b64 v{vT}, v[{vOUT+2*r}:{vOUT+2*r+1}] offset:{HT+r*HTS}")
        e(f"v_and_b32 v{vLA}, 7, v0")
        e(f"v_mul_u32_u24 v{vLA}, {HTS}, v{vLA}")
        e(f"v_lshl_add_u32 v{vLA}, v{vS}, 4, v{vLA}")
        e("s_waitcnt lgkmcnt(0)")
        for kb in range(4):
            e(f"ds_read_b128 v[{vAF+4*kb}:{vAF+4*kb+3}], v{vLA} offset:{HT+64*kb}")
        self.c("partial sums go to M[f][row][column]")
        e(f"s_mul_i32 s{sT0}, s2, {8*2304}")
        e(f"s_add_u32 s{sT0}, s{sT0}, {M_OFF}")
        self.srd(RC, sWS, f"s{sT0}", None, 8 * 2304)
        vSO = 16
        e(f"v_and_b32 v{vSO}, 1, v{vS}")
        e(f"v_mul_u32_u24 v{vSO}, {4*2304}, v{vSO}")
        e(f"v_lshl_add_u32 v{vSO}, v{vC}, 5, v{vSO}")
        e(f"v_lshl_add_u32 v{vSO}, v{vU}, 4, v{vSO}")
        e(f"v_add_u32 v{vSO+1}, {2*2304}, v{vSO}")
        e("s_waitcnt lgkmcnt(0)")
        e(f"s_mov_b32 s{sCNT}, 0")
        self.lab("L_g2")
        for kb in range(4):
            if kb == 3:
                e(f"s_add_u32 s{sOFF}, s{sOFF}, 256")
            loads2((kb + 1) & 1, (kb + 1) & 3)
            e("s_waitcnt vmcnt(8)")
            self.transpose(vF, vL[kb & 1])
            e("s_nop 0")
            mmas(vAF + 4 * kb, first=(kb == 0))
        e("s_nop 7")
        for r in range(4):
            for k in range(4):
                e(f"v_cndmask_b32 v{vOUT+4*r+k}, v{vAC+4*k+r}, v{vAC+16+4*k+r}, s[{sMSK}:{sMSK+1}]")
        e(f"s_lshl_b32 s{sT1}, s{sCNT}, 9")
        e(f"s_cmp_eq_u32 s{sCNT}, 4")
        e("s_cselect_b32 exec_lo, 0x00ff00ff, -1")
        e("s_cselect_b32 exec_hi, 0x00ff00ff, -1")
        for r in range(4):
            e(f"buffer_store_dwordx4 v[{vOUT+4*r}:{vOUT+4*r+3}], v{vSO+(r>>1)}, s[{RC}:{RC+3}], s{sT1} offen offset:{(r&1)*2304} sc1")
        e("s_mov_b64 exec, -1")
        e("s_waitcnt vmcnt(0)")
        e(f"s_add_u32 s{sCNT}, s{sCNT}, 1")
        e(f"s_cmp_lg_u32 s{sCNT}, 5")
        e("s_cbranch_scc1 L_g2")
        e(f"v_mov_b32 v{vT}, 1")
        e("s_mov_b64 exec, 1")
        e(f"buffer_atomic_add v{vT}, off, s[{RE}:{RE+3}], 0 offset:64 sc1")
        e("s_mov_b64 exec, -1")

    def treduce(self, v):
        e = self.e
        e("s_nop 1")
        e(f"v_permlane32_swap_b32 v{v}, v{v+1}")
        e(f"v_permlane32_swap_b32 v{v+2}, v{v+3}")
        e("s_nop 0")
        e(f"v_add_f32 v{v}, v{v}, v{v+1}")
        e(f"v_add_f32 v{v+2}, v{v+2}, v{v+3}")
        e("s_nop 1")
        e(f"v_permlane16_swap_b32 v{v}, v{v+2}")
        e("s_nop 1")
        e(f"v_add_f32 v{v}, v{v}, v{v+2}")
        e("s_nop 1")
        e(f"v_add_f32_dpp v{v}, v{v}, v{v} row_ror:8 row_mask:0xf bank_mask:0xf")

    def consumer_pre(self, vG, vXV, vCOL, vPL):
        e = self.e
        vT, vU, vCH, vGR, vMO = 24, 25, 26, 27, 28
        vB = 64
        self.c("this wave finishes 32 output columns of row b: line h of every partial")
        e(f"v_and_b32 v{vCH}, 7, v0")
        e(f"v_lshrrev_b32 v{vGR}, 3, v0")
        e(f"s_cmp_ge_u32 s{sH}, 16")
        e("s_cbranch_scc1 L_coltail")
        e(f"s_lshr_b32 s{sT0}, s{sH}, 2")
        e(f"s_mul_i32 s{sT0}, s{sT0}, 144")
        e(f"s_and_b32 s{sT1}, s{sH}, 1")
        e(f"s_lshl_b32 s{sT1}, s{sT1}, 6")
        e(f"s_add_u32 s{sT0}, s{sT0}, s{sT1}")
        e(f"s_and_b32 s{sT1}, s{sH}, 2")
        e(f"s_lshl_b32 s{sT1}, s{sT1}, 1")
        e(f"s_add_u32 s{sT0}, s{sT0}, s{sT1}")
        e(f"v_lshlrev_b32 v{vCOL}, 3, v{vCH}")
        e(f"v_add_u32 v{vCOL}, s{sT0}, v{vCOL}")
        e("s_branch L_coldone")
        self.lab("L_coltail")
        e(f"s_sub_u32 s{sT0}, s{sH}, 16")
        e(f"s_mul_i32 s{sT0}, s{sT0}, 288")
        e(f"s_add_u32 s{sT0}, s{sT0}, 128")
        e(f"v_lshrrev_b32 v{vT}, 2, v{vCH}")
        e(f"v_mul_u32_u24 v{vT}, 144, v{vT}")
        e(f"v_and_b32 v{vU}, 3, v{vCH}")
        e(f"v_lshl_add_u32 v{vCOL}, v{vU}, 2, v{vT}")
        e(f"v_add_u32 v{vCOL}, s{sT0}, v{vCOL}")
        self.lab("L_coldone")
        e(f"v_mul_u32_u24 v{vMO}, {8*2304}, v{vGR}")
        e(f"v_lshl_add_u32 v{vMO}, v{vCOL}, 2, v{vMO}")
        e(f"s_mul_i32 s{sT0}, s{sB}, 2304")
        e(f"v_add_u32 v{vMO}, s{sT0}, v{vMO}")
        e(f"v_mul_u32_u24 v{vPL}, 2304, v{vGR}")
        e(f"v_lshl_add_u32 v{vPL}, v{vCH}, 4, v{vPL}")
        e(f"s_mul_i32 s{sT0}, s{sB}, {32*2304}")
        e(f"s_lshl_b32 s{sT1}, s{sH}, 7")
        e(f"s_add_u32 s{sT0}, s{sT0}, s{sT1}")
        e(f"v_add_u32 v{vPL}, s{sT0}, v{vPL}")
        self.c("column of this lane after the reduction, in bytes of bf16")
        e(f"v_bfe_u32 v{vT}, v0, 5, 1")
        e(f"v_bfe_u32 v{vU}, v0, 4, 1")
        e(f"v_lshl_add_u32 v{vT}, v{vU}, 1, v{vT}")
        e(f"v_add_u32 v{vCOL}, v{vCOL}, v{vT}")
        e(f"v_lshlrev_b32 v{vCOL}, 1, v{vCOL}")
        e(f"s_mul_i32 s{sT0}, s{sB}, 1152")
        self.srd(RA, sX, f"s{sT0}", None, 1152)
        e(f"buffer_load_ushort v{vXV}, v{vCOL}, s[{RA}:{RA+3}], 0 offen")
        self.srd(RB, sB2, None, None, 1152)
        e(f"buffer_load_ushort v{vG}, v{vCOL}, s[{RB}:{RB+3}], 0 offen")
        self.c("wait until every slot of row b is marked empty and every MLP unit has published")
        e(f"s_lshl_b32 s{sT1}, s{sB}, 2")
        e(f"s_mov_b32 s{sSP}, 0x40000")
        self.lab("L_pre_poll")
        e(f"buffer_load_dword v{vT}, off, s[{RE}:{RE+3}], s{sT1} sc1")
        e(f"buffer_load_dword v{vU}, off, s[{RE}:{RE+3}], 0 offset:64 sc1")
        e("s_waitcnt vmcnt(0)")
        e(f"v_readfirstlane_b32 s{sT0}, v{vT}")
        e(f"v_readfirstlane_b32 s{sT2}, v{vU}")
        e(f"s_lshl_b32 s{sT0}, s{sT0}, 8")
        e(f"s_add_u32 s{sT0}, s{sT0}, s{sT2}")
        e(f"s_cmp_eq_u32 s{sT0}, {128*256+NMLP}")
        e("s_cbranch_scc1 L_pre_go")
        e("s_sleep 32")
        e(f"s_sub_u32 s{sSP}, s{sSP}, 1")
        e(f"s_cmp_lg_u32 s{sSP}, 0")
        e("s_cbranch_scc1 L_pre_poll")
        self.lab("L_pre_go")
        self.srd(RC, sWS, M_OFF, None, NMLP * 8 * 2304)
        for t in range(5):
            e(f"s_mov_b32 s{sOFF}, {8*t*8*2304}")
            e(f"buffer_load_dwordx4 v[{vB+4*t}:{vB+4*t+3}], v{vMO}, s[{RC}:{RC+3}], s{sOFF} offen sc1")
        e(f"s_mul_i32 s{sT0}, s{sB}, 1152")
        self.srd(RA, sOUT, f"s{sT0}", None, 1152)
        e(f"v_lshlrev_b32 v{vXV}, 16, v{vXV}")
        e(f"v_lshlrev_b32 v{vG}, 16, v{vG}")
        e("s_waitcnt vmcnt(0)")
        for t in range(1, 5):
            for k in range(4):
                e(f"v_add_f32 v{vB+k}, v{vB+k}, v{vB+4*t+k}")
        self.treduce(vB)
        self.rbf(vB, vB)
        e(f"v_add_f32 v{vB}, v{vB}, v{vG}")
        self.rbf(vB, vB)
        e(f"v_mul_f32 v{vT}, {f32(-1.4426950408889634)}, v{vB}")
        self.sigmoid_mul(vG, vB, vT, vU)
        self.rbf(vG, vG)

    def consumer_final(self, vG, vXV, vCOL, vPL):
        e = self.e
        vB, vT = 64, 24
        for t in range(1, 4):
            e(f"s_mov_b32 s{sT0+t-1}, {8*t*2304}")
        e(f"s_mov_b32 s{sSP}, 0x100000")
        self.lab("L_fin_poll")
        for t in range(4):
            so = "0" if t == 0 else f"s{sT0+t-1}"
            e(f"buffer_load_dwordx4 v[{vB+4*t}:{vB+4*t+3}], v{vPL}, s[{RD}:{RD+3}], {so} offen sc1")
        e("s_waitcnt vmcnt(0)")
        e(f"v_max_u32 v{vT}, v{vB}, v{vB+1}")
        for k in range(1, 8):
            e(f"v_max3_u32 v{vT}, v{vT}, v{vB+2*k}, v{vB+2*k+1}")
        e(f"v_cmp_eq_u32 vcc, -1, v{vT}")
        e(f"s_sub_u32 s{sSP}, s{sSP}, 1")
        e("s_cbranch_vccz L_fin_go")
        e(f"s_cmp_lg_u32 s{sSP}, 0")
        e("s_cbranch_scc1 L_fin_poll")
        self.lab("L_fin_go")
        for k in range(4):
            e(f"v_add_f32 v{vB+k}, v{vB+k}, v{vB+4+k}")
            e(f"v_add_f32 v{vB+8+k}, v{vB+8+k}, v{vB+12+k}")
        for k in range(4):
            e(f"v_add_f32 v{vB+k}, v{vB+k}, v{vB+8+k}")
        self.treduce(vB)
        self.rbf(vB, vB)
        e(f"v_mul_f32 v{vB}, v{vB}, v{vG}")
        self.rbf(vB, vB)
        e(f"v_add_f32 v{vB}, v{vB}, v{vXV}")
        e(f"v_cvt_pk_bf16_f32 v{vB}, v{vB}, v{vB}")
        e("s_mov_b32 exec_lo, 0x00ff00ff")
        e("s_mov_b32 exec_hi, 0x00ff00ff")
        e(f"buffer_store_short v{vB}, v{vCOL}, s[{RA}:{RA+3}], 0 offen")
        e("s_mov_b64 exec, -1")

    def build(self, header):
        e = self.e
        self.L.extend(header)
        self.L.append(f"; @launch grid=(256,1,1) block=(512,1,1) lds={LDS_BYTES}")
        self.L.append('.amdgcn_target "amdgcn-amd-amdhsa--gfx950"')
        self.L.append(".text")
        self.L.append(f".globl {NAME}_kernel")
        self.L.append(".p2align 8")
        self.L.append(f".type {NAME}_kernel,@function")
        self.lab(f"{NAME}_kernel")
        e("s_cmp_ge_u32 s2, 256")
        e("s_cbranch_scc1 L_exit")
        e("s_load_dwordx16 s[8:23], s[0:1], 0")
        e("s_load_dwordx8 s[24:31], s[0:1], 64")
        e("s_load_dwordx2 s[32:33], s[0:1], 96")
        e("v_lshrrev_b32 v1, 6, v0")
        e("v_and_b32 v0, 63, v0")
        e(f"v_readfirstlane_b32 s{sWAVE}, v1")
        e(f"s_lshr_b32 s{sB}, s2, 5")
        e(f"s_and_b32 s{sH}, s2, 31")
        e(f"s_and_b32 s{sHW}, s{sWAVE}, 3")
        e(f"s_cmp_ge_u32 s{sWAVE}, 4")
        e("s_waitcnt lgkmcnt(0)")
        e("s_cbranch_scc1 L_stream")
        self.helper()
        self.streamer()
        self.lab("L_exit")
        e("s_endpgm")
        self.L.append('.section .rodata,"a"')
        self.L.append(".p2align 6")
        self.L.append(f".amdhsa_kernel {NAME}_kernel")
        for d in ("next_free_vgpr 256", "next_free_sgpr 80", "accum_offset 256",
                  "group_segment_fixed_size 0", "kernarg_size 104", "user_sgpr_count 2",
                  "user_sgpr_kernarg_segment_ptr 1", "system_sgpr_workgroup_id_x 1",
                  "float_denorm_mode_32 3"):
            self.L.append("  .amdhsa_" + d)
        self.L.append(".end_amdhsa_kernel")
        return "\n".join(self.L) + "\n"


def header():
    ref = open(f"cdna_kernels/{NAME}.s.ref").read().splitlines()
    return [l for l in ref if l.startswith(";") and "@launch" not in l]


def generate(**kw):
    return G(**kw).build(header())


if __name__ == "__main__":
    kw = {}
    out = f"cdna_kernels/{NAME}.s"
    for a in sys.argv[1:]:
        k, v = a.split("=", 1)
        if k == "out":
            out = v
        else:
            kw[k] = int(v) if v.lstrip("-").isdigit() else v
    open(out, "w").write(generate(**kw))
```

```python
import sys, struct

NAME = "recurrent_scan__mha_block_cached__dense_activation_gelu__decode"

def f32(x):
    return "0x%08x" % struct.unpack("<I", struct.pack("<f", x))[0]

DEFAULTS = dict(
    d_fill=6,
    d_k=5,
    d_klast=6,
    d_v=5,
    pol_kv="nt",
    pol_wq="nt",
    pol_wo="nt",
    pol_mlp="nt",
    ldsk=1,
    d_wo=1,
    d_mlp=16,
    d_kmlp=0,
    d_vlast=0,
    prio=1,
    fl_iter=5,
    pol_clear="sc1",
    nopre=0,
    hmap=0,
    d_wq=4,
    touch=0,
    nowo=0,
    noclear=0,
    nomlp=0,
    pre_sleep=127,
    stamps=0,
)

QP = 0
OT = 2048
OTS = 288
ST = 3328
FL = 3360
XT = 4096
XTS = 1168
HT = XT + 8 * XTS
HTS = 272
KB = 16384
LDS_SMALL = HT + 8 * HTS

P_OFF = 0
M_OFF = 0x100000
STAMP_OFF = 0x200000
NMLP = 36

sX, sK, sV, sWQ, sWO, sW1, sB1 = 8, 10, 12, 14, 16, 20, 22
sW2, sB2, sOUT, sDBG, sWS = 24, 26, 28, 30, 32
sWAVE, sB, sH, sHW = 3, 34, 35, 4
RA, RB, RC, RD, RE = 36, 40, 44, 48, 52
sOFF, sCNT, sT0, sT1, sT2 = 56, 57, 58, 59, 60
sODD, sBIT1 = 62, 64
sPLO, sPHI, sDLO, sDHI = 66, 67, 68, 69
sMSK = 70
sTS = 72
sSP = 74
sID = 5


class G:
    def __init__(self, **kw):
        self.o = dict(DEFAULTS)
        self.o.update(kw)
        self.L = []
        self.nstamp = 0

    def e(self, s):
        self.L.append("    " + s)

    def lab(self, s):
        self.L.append(s + ":")

    def c(self, s):
        self.L.append("    ; " + s)

    def srd(self, r, ptr, off_lo=None, off_hi=None, nrec=0):
        if off_lo is None:
            self.e(f"s_mov_b32 s{r}, s{ptr}")
            self.e(f"s_and_b32 s{r+1}, s{ptr+1}, 0xffff")
        else:
            self.e(f"s_add_u32 s{r}, s{ptr}, {off_lo}")
            self.e(f"s_addc_u32 s{r+1}, s{ptr+1}, {off_hi if off_hi else 0}")
            self.e(f"s_and_b32 s{r+1}, s{r+1}, 0xffff")
        self.e(f"s_mov_b32 s{r+2}, {nrec}")
        self.e(f"s_mov_b32 s{r+3}, 0x20000")

    def stamp(self, idx, vs):
        if not self.o["stamps"]:
            return
        self.e(f"s_memrealtime s[{sTS}:{sTS+1}]")
        self.e("s_waitcnt lgkmcnt(0)")
        self.e(f"v_writelane_b32 v{vs}, s{sTS}, {idx}")

    def stamp_iter(self, base, vs):
        if not self.o["stamps"]:
            return
        self.e(f"s_memrealtime s[{sTS}:{sTS+1}]")
        self.e(f"s_sub_u32 m0, {base + 7}, s{sCNT}")
        self.e("s_waitcnt lgkmcnt(0)")
        self.e(f"v_writelane_b32 v{vs}, s{sTS}, m0")

    def stamp_flush(self, vs, vt):
        if not self.o["stamps"]:
            return
        self.e("s_mov_b64 exec, -1")
        self.e(f"s_getreg_b32 s{sT0}, hwreg(HW_REG_XCC_ID)")
        self.e(f"v_writelane_b32 v{vs}, s{sT0}, 31")
        self.e(f"s_lshl_b32 s{sT0}, s2, 3")
        self.e(f"s_add_u32 s{sT0}, s{sT0}, s{sWAVE}")
        self.e(f"s_lshl_b32 s{sT0}, s{sT0}, 7")
        self.e(f"s_add_u32 s{sT0}, s{sT0}, {STAMP_OFF}")
        self.e(f"v_lshlrev_b32 v{vt}, 2, v0")
        self.e(f"v_add_u32 v{vt}, s{sT0}, v{vt}")
        self.e("s_mov_b32 exec_hi, 0")
        self.e(f"global_store_dword v{vt}, v{vs}, s[{sWS}:{sWS+1}]")
        self.e("s_waitcnt vmcnt(0)")

    def allreduce(self, op, v, t, rows=True):
        for mod in ("quad_perm:[1,0,3,2]", "quad_perm:[2,3,0,1]", "row_half_mirror", "row_mirror"):
            self.e("s_nop 1")
            self.e(f"{op}_dpp v{v}, v{v}, v{v} {mod} row_mask:0xf bank_mask:0xf")
        if rows:
            for sw in ("v_permlane16_swap_b32", "v_permlane32_swap_b32"):
                self.e(f"v_mov_b32 v{t}, v{v}")
                self.e("s_nop 1")
                self.e(f"{sw} v{t}, v{v}")
                self.e("s_nop 1")
                self.e(f"{op} v{v}, v{v}, v{t}")

    def masks(self, vm, t0, t1):
        self.e(f"v_and_b32 v{t0}, 1, v0")
        self.e(f"v_lshlrev_b32 v{t0}, 4, v{t0}")
        self.e(f"v_mov_b32 v{t1}, 0xffff")
        self.e(f"v_lshlrev_b32 v{t0}, v{t0}, v{t1}")
        self.e(f"v_bfe_u32 v{t1}, v0, 1, 2")
        for r in range(4):
            self.e(f"v_cmp_eq_u32 vcc, {r}, v{t1}")
            self.e("s_nop 1")
            self.e(f"v_cndmask_b32 v{vm+r}, 0, v{t0}, vcc")

    def rbf(self, dst, src):
        self.e(f"v_cvt_pk_bf16_f32 v{dst}, v{src}, v{src}")
        self.e(f"v_and_b32 v{dst}, 0xffff0000, v{dst}")

    def streamer(self):
        o = self.o
        e = self.e
        vOFF, vQ, vM, vA, vACC, vPA, vPB, vT, vR0, vMX, vS, vP, vRING, vST = \
            1, 4, 8, 12, 20, 24, 25, 26, 27, 28, 32, 40, 128, 30
        R = 32
        pol = o["pol_kv"]

        def ring(n):
            return f"v[{vRING+4*n}:{vRING+4*n+3}]"

        def load(n, srd):
            e(f"buffer_load_dwordx4 {ring(n)}, v{vOFF}, s[{srd}:{srd+3}], s{sOFF} offen offset:{(n%4)*1024} {pol}")
            if n % 4 == 3:
                e(f"s_add_u32 s{sOFF}, s{sOFF}, 16384")

        self.lab("L_stream")
        if o["prio"]:
            e("s_setprio 3")
        if o["stamps"]:
            e(f"v_mov_b32 v{vST}, 0")
        self.stamp(0, vST)
        e(f"s_lshl_b32 s{sT0}, s{sID}, 20")
        self.srd(RA, sK, f"s{sT0}", None, 1 << 20)
        e(f"s_lshl_b32 s{sT1}, s{sHW}, 12")
        e(f"v_lshlrev_b32 v{vOFF}, 4, v0")
        e(f"v_add_u32 v{vOFF}, s{sT1}, v{vOFF}")
        lds = o["ldsk"]
        if lds:
            e(f"s_lshl_b32 s{sT1}, s{sHW}, 15")
            e(f"s_add_u32 m0, s{sT1}, {KB}")
        e(f"s_mov_b32 s{sOFF}, {7*131072 if lds else 0}")
        for nn in range(2 * R if lds else R):
            n = nn % R
            if nn >= o["d_fill"]:
                e(f"s_waitcnt vmcnt({o['d_fill']-1})")
            if nn in ((16, 32, 48) if lds else (8, 16, 24)):
                self.stamp(7 + nn // (16 if lds else 8), vST)
            if lds and nn < R:
                e(f"buffer_load_dwordx4 v{vOFF}, s[{RA}:{RA+3}], s{sOFF} offen offset:{(n%4)*1024} {pol} lds")
                if n % 4 == 3:
                    e(f"s_add_u32 m0, m0, 4096")
                    e(f"s_add_u32 s{sOFF}, s{sOFF}, 16384" if n < R - 1 else f"s_mov_b32 s{sOFF}, 0")
            else:
                load(n, RA)
            if nn == o["d_fill"] - 1:
                self.srd(RB, sV, f"s{sT0}", None, 1 << 20)
                self.masks(vM, vT, vR0)
                e(f"s_mov_b32 s{sODD}, 0xaaaaaaaa")
                e(f"s_mov_b32 s{sODD+1}, 0xaaaaaaaa")
                e(f"s_mov_b32 s{sBIT1}, 0xcccccccc")
                e(f"s_mov_b32 s{sBIT1+1}, 0xcccccccc")
                e(f"s_mov_b32 s{sDLO}, 0x01000100")
                e(f"s_mov_b32 s{sDHI}, 0x03020302")
                e(f"v_and_b32 v2, 15, v0")
                e(f"v_lshlrev_b32 v2, 5, v2")
                for k in range(8):
                    e(f"v_mov_b32 v{vS+k}, 0")
        self.stamp(1, vST)
        e("s_barrier")
        self.stamp(2, vST)
        self.c("q = bf16(sum of the four helper partials), elements 8c..8c+7")
        for w in range(4):
            e(f"ds_read_b128 v[{vP+8*w}:{vP+8*w+3}], v2 offset:{QP+512*w}")
            e(f"ds_read_b128 v[{vP+8*w+4}:{vP+8*w+7}], v2 offset:{QP+512*w+16}")
        e("s_waitcnt lgkmcnt(0)")
        for k in range(8):
            e(f"v_add_f32 v{vP+k}, v{vP+k}, v{vP+8+k}")
            e(f"v_add_f32 v{vP+16+k}, v{vP+16+k}, v{vP+24+k}")
        for k in range(8):
            e(f"v_add_f32 v{vP+k}, v{vP+k}, v{vP+16+k}")
        for k in range(4):
            e(f"v_cvt_pk_bf16_f32 v{vQ+k}, v{vP+2*k}, v{vP+2*k+1}")

        def reduce16(dst, base):
            p = lambda j: f"v{base+j}"
            full = "row_mask:0xf bank_mask:0xf"
            for m in range(8):
                a, b = p(2 * m), p(2 * m + 1)
                e(f"v_add_f32_dpp {a}, {a}, {a} row_ror:8 row_mask:0xf bank_mask:0x3")
                e(f"v_add_f32_dpp {a}, {b}, {b} row_ror:8 row_mask:0xf bank_mask:0xc")
            for m in range(4):
                a, b = p(4 * m), p(4 * m + 2)
                e(f"v_add_f32_dpp {a}, {a}, {a} row_shl:4 row_mask:0xf bank_mask:0x5")
                e(f"v_add_f32_dpp {a}, {b}, {b} row_shr:4 row_mask:0xf bank_mask:0xa")
            for j in (0, 4, 8, 12):
                e(f"v_add_f32_dpp {p(j)}, {p(j)}, {p(j)} quad_perm:[1,0,3,2] {full}")
            e(f"v_cndmask_b32 {p(0)}, {p(0)}, {p(4)}, s[{sODD}:{sODD+1}]")
            e(f"v_cndmask_b32 {p(8)}, {p(8)}, {p(12)}, s[{sODD}:{sODD+1}]")
            e("s_nop 0")
            e(f"v_add_f32_dpp {p(0)}, {p(0)}, {p(0)} quad_perm:[2,3,0,1] {full}")
            e(f"v_add_f32_dpp {p(8)}, {p(8)}, {p(8)} quad_perm:[2,3,0,1] {full}")
            e(f"v_cndmask_b32 v{dst}, {p(0)}, {p(8)}, s[{sBIT1}:{sBIT1+1}]")

        def dots(dst, b):
            e(f"v_dot2_f32_bf16 v{dst}, v{b}, v{vQ}, 0")
            for k in range(1, 4):
                e(f"v_dot2_f32_bf16 v{dst}, v{b+k}, v{vQ+k}, v{dst}")

        def scores(r0, r1):
            self.c("scores: bf16(dot), times Dh^-0.5, bf16 again")
            e(f"v_cvt_pk_bf16_f32 v{vT}, v{r0}, v{r1}")
            e(f"v_lshlrev_b32 v{r0}, 16, v{vT}")
            e(f"v_and_b32 v{vT}, 0xffff0000, v{vT}")
            e(f"v_mul_f32 v{r0}, {f32(128 ** -0.5)}, v{r0}")
            e(f"v_mul_f32 v{vT}, {f32(128 ** -0.5)}, v{vT}")
            for k in range(7):
                e(f"v_mov_b32 v{vS+k}, v{vS+k+1}")
            e(f"v_cvt_pk_bf16_f32 v{vS+7}, v{r0}, v{vT}")

        vP2, vTMP, vR2, vLA = 72, 88, 29, 3

        def ldsread(n):
            t = vTMP + 4 * (n % 4)
            e(f"ds_read_b128 v[{t}:{t+3}], v{vLA} offset:{1024*n}")

        def kbody(d, srd, with_lds=False):
            if with_lds:
                e(f"s_lshl_b32 s{sT1}, s{sHW}, 15")
                e(f"s_add_u32 s{sT1}, s{sT1}, {KB}")
                e(f"v_lshlrev_b32 v{vLA}, 4, v0")
                e(f"v_add_u32 v{vLA}, s{sT1}, v{vLA}")
                for n in range(3):
                    ldsread(n)
            for n in range(R):
                j = n % 16
                e(f"s_waitcnt vmcnt({d-1})")
                dots(vP + j, vRING + 4 * n)
                load(n, srd)
                if with_lds:
                    if n + 3 < R:
                        ldsread(n + 3)
                    e(f"s_waitcnt lgkmcnt({min(3, R-1-n)})")
                    dots(vP2 + j, vTMP + 4 * (n % 4))
                if n == 15:
                    reduce16(vR0, vP)
                    if with_lds:
                        reduce16(vR2, vP2)
            reduce16(vP, vP)
            scores(vR0, vP)
            if with_lds:
                reduce16(vP2, vP2)
                scores(vR2, vP2)

        def kloop(label, d):
            self.lab(label)
            kbody(d, RA)
            self.stamp_iter(11, vST)
            e(f"s_sub_u32 s{sCNT}, s{sCNT}, 1")
            e(f"s_cmp_lg_u32 s{sCNT}, 0")
            e(f"s_cbranch_scc1 {label}")

        e(f"s_mov_b32 s{sCNT}, {6 if lds else 7}")
        if lds:
            self.stamp(11, vST)
        if o["d_kmlp"]:
            e(f"s_cmp_ge_u32 s2, {NMLP}")
            e("s_cbranch_scc1 L_k")
            kloop("L_k2", o["d_kmlp"])
            e("s_branch L_kdone")
        kloop("L_k", o["d_k"])
        self.lab("L_kdone")
        self.stamp(3, vST)
        e(f"s_mov_b32 s{sOFF}, 0")
        kbody(o["d_klast"], RB, with_lds=bool(lds))
        self.stamp(4, vST)
        self.c("softmax numerators against this wave's maximum")
        for k in range(8):
            e(f"v_lshlrev_b32 v{vP+2*k}, 16, v{vS+k}")
            e(f"v_and_b32 v{vP+2*k+1}, 0xffff0000, v{vS+k}")
        e(f"v_max_f32 v{vMX}, v{vP}, v{vP+1}")
        for k in range(1, 8):
            e(f"v_max3_f32 v{vMX}, v{vMX}, v{vP+2*k}, v{vP+2*k+1}")
        self.allreduce("v_max_f32", vMX, vT)
        for k in range(16):
            e(f"v_sub_f32 v{vP+k}, v{vP+k}, v{vMX}")
        for k in range(16):
            e(f"v_mul_f32 v{vP+k}, {f32(1.4426950408889634)}, v{vP+k}")
        for k in range(16):
            e(f"v_exp_f32 v{vP+k}, v{vP+k}")
        e("s_nop 0")
        for k in range(8):
            e(f"v_cvt_pk_bf16_f32 v{vS+k}, v{vP+2*k}, v{vP+2*k+1}")
        for k in range(8):
            e(f"v_add_f32 v{vP+k}, v{vP+k}, v{vP+8+k}")
        for k in range(4):
            e(f"v_add_f32 v{vP+k}, v{vP+k}, v{vP+4+k}")
        e(f"v_add_f32 v{vP}, v{vP}, v{vP+2}")
        e(f"v_add_f32 v{vP+1}, v{vP+1}, v{vP+3}")
        e(f"v_add_f32 v{vP}, v{vP}, v{vP+1}")
        self.allreduce("v_add_f32", vP, vT)
        e(f"s_lshl_b32 s{sT1}, s{sHW}, 2")
        e(f"v_mov_b32 v{vT}, s{sT1}")
        e(f"ds_write_b32 v{vT}, v{vMX} offset:{ST}")
        e(f"ds_write_b32 v{vT}, v{vP} offset:{ST+16}")
        e(f"v_mov_b32 v{vR2}, {FL}")
        for r in range(4):
            e(f"v_mov_b32 v{vACC+r}, 0")
        self.c("address of this wave's row in the o table")
        e(f"v_and_b32 v2, 15, v0")
        e(f"v_lshlrev_b32 v2, 4, v2")
        e(f"v_bfe_u32 v3, v0, 4, 1")
        e(f"v_lshl_add_u32 v2, v3, 3, v2")
        e(f"s_mul_i32 s{sT1}, s{sHW}, {OTS}")
        e(f"v_add_u32 v2, s{sT1}, v2")
        self.stamp(5, vST)

        def cof(j):
            return 8 * (j & 1) + 4 * ((j >> 1) & 1) + ((j >> 2) & 1) + 2 * ((j >> 3) & 1)

        def abuild(n):
            pp = vPA if n < 16 else vPB
            a = vA + 4 * (n & 1)
            for r in range(4):
                e(f"v_and_b32_dpp v{a+r}, v{pp}, v{vM+r} row_newbcast:{cof(n%16)} row_mask:0xf bank_mask:0xf")

        def vbody(d, drain):
            e(f"v_perm_b32 v{vPA}, v{vS}, v{vS}, s{sDLO}")
            e(f"v_perm_b32 v{vPB}, v{vS}, v{vS}, s{sDHI}")
            if not drain:
                for k in range(7):
                    e(f"v_mov_b32 v{vS+k}, v{vS+k+1}")
            else:
                e("s_nop 0")
            abuild(0)
            e("s_nop 0")
            for n in range(R):
                a = vA + 4 * (n & 1)
                e(f"s_waitcnt vmcnt({(R-1-n) if drain else d-1})")
                e(f"v_mfma_f32_16x16x32_bf16 v[{vACC}:{vACC+3}], v[{a}:{a+3}], {ring(n)}, v[{vACC}:{vACC+3}]")
                if n + 1 < R:
                    abuild(n + 1)
                if drain:
                    e("s_nop 0")
                else:
                    load(n, RB)

        e(f"s_mov_b32 s{sCNT}, 7")
        self.lab("L_v")
        e(f"v_mov_b32 v{vT}, s{sCNT}")
        e(f"ds_write_b32 v{vR2}, v{vT}")
        vbody(o["d_v"], False)
        self.stamp_iter(18, vST)
        e(f"s_sub_u32 s{sCNT}, s{sCNT}, 1")
        e(f"s_cmp_lg_u32 s{sCNT}, {1 if o['d_vlast'] else 0}")
        e("s_cbranch_scc1 L_v")
        if o["d_vlast"]:
            vbody(o["d_vlast"], False)
            self.stamp_iter(18, vST)
        self.stamp(6, vST)
        vbody(0, True)
        e("s_nop 7")
        e(f"v_cvt_pk_bf16_f32 v{vACC}, v{vACC}, v{vACC+1}")
        e(f"v_cvt_pk_bf16_f32 v{vACC+1}, v{vACC+2}, v{vACC+3}")
        e(f"ds_write_b64 v2, v[{vACC}:{vACC+1}] offset:{OT}")
        e("s_waitcnt lgkmcnt(0)")
        self.stamp(7, vST)
        e("s_barrier")
        self.stamp_flush(vST, vT)
        e("s_endpgm")

    def helper(self):
        o = self.o
        e = self.e
        vST = 31
        vS, vC = 1, 2
        vXO, vWO = 3, 4
        vM, vA, vACC = 8, 12, 20
        vT, vU, vMEAN, vVAR = 24, 25, 26, 27
        vX = 32
        vD = 44
        vW = 64
        self.lab("L_helper")
        if o["stamps"]:
            e(f"v_mov_b32 v{vST}, 0")
        self.stamp(0, vST)
        e(f"s_mul_i32 s{sT0}, s{sB}, 1152")
        self.srd(RA, sX, f"s{sT0}", None, 1152)
        e(f"s_lshl_b32 s{sT0}, s{sH}, 8")
        self.srd(RB, sWQ, f"s{sT0}", None, 0)
        e(f"s_sub_u32 s{RB+2}, {576*8192}, s{sT0}")
        e(f"v_lshrrev_b32 v{vS}, 4, v0")
        e(f"v_and_b32 v{vC}, 15, v0")
        self.c("x element of lane (s, c), register t: 64 t + 4 ((c + 4 hw) & 15) + s")
        e(f"s_lshl_b32 s{sT1}, s{sHW}, 2")
        e(f"v_add_u32 v{vXO}, s{sT1}, v{vC}")
        e(f"v_and_b32 v{vXO}, 15, v{vXO}")
        e(f"v_lshl_add_u32 v{vXO}, v{vXO}, 2, v{vS}")
        e(f"v_lshlrev_b32 v{vXO}, 1, v{vXO}")
        for t in range(9):
            e(f"buffer_load_ushort v{vX+t}, v{vXO}, s[{RA}:{RA+3}], 0 offen offset:{128*t}")
        e(f"v_lshlrev_b32 v{vWO}, 13, v{vS}")
        e(f"v_lshl_add_u32 v{vWO}, v{vC}, 4, v{vWO}")
        e(f"s_lshl_b32 s{sT1}, s{sHW}, 17")
        e(f"v_add_u32 v{vWO}, s{sT1}, v{vWO}")
        dq = o["d_wq"]

        def wqload(n):
            t, cc = divmod(n, 4)
            e(f"s_mov_b32 s{sOFF}, {(64*t+4*cc)*8192}")
            e(f"buffer_load_dwordx4 v[{vW+4*n}:{vW+4*n+3}], v{vWO}, s[{RB}:{RB+3}], s{sOFF} offen {o['pol_wq']}")
        for n in range(dq):
            wqload(n)
        if o["touch"]:
            e(f"s_lshl_b32 s{sT0}, s{sID}, 20")
            self.srd(RC, sV, f"s{sT0}", None, 1 << 20)
        self.masks(vM, vT, vU)
        e(f"s_mov_b32 s{sPLO}, 0x05040100")
        e(f"s_mov_b32 s{sPHI}, 0x07060302")
        e(f"s_waitcnt vmcnt({dq})")
        self.stamp(1, vST)
        self.c("layer norm of row b")
        for t in range(9):
            e(f"v_lshlrev_b32 v{vX+t}, 16, v{vX+t}")
        e(f"v_add_f32 v{vMEAN}, v{vX}, v{vX+1}")
        for t in range(2, 9):
            e(f"v_add_f32 v{vMEAN}, v{vMEAN}, v{vX+t}")
        self.allreduce("v_add_f32", vMEAN, vT)
        e(f"v_mul_f32 v{vMEAN}, {f32(1/576)}, v{vMEAN}")
        for t in range(9):
            e(f"v_sub_f32 v{vD+t}, v{vX+t}, v{vMEAN}")
        e(f"v_mul_f32 v{vVAR}, v{vD}, v{vD}")
        for t in range(1, 9):
            e(f"v_fmac_f32 v{vVAR}, v{vD+t}, v{vD+t}")
        self.allreduce("v_add_f32", vVAR, vT)
        self.ln_finish(vMEAN, vVAR, vT)
        for t in range(9):
            e(f"v_sub_f32 v{vD+t}, v{vX+t}, v{vMEAN}")
        for t in range(9):
            e(f"v_cvt_pk_bf16_f32 v{vD+t}, v{vD+t}, v{vD+t}")
        for t in range(9):
            e(f"v_and_b32 v{vD+t}, 0xffff0000, v{vD+t}")
        for t in range(9):
            self.divide(vX + t, vD + t, vVAR, vT, vU)
        for t in range(9):
            e(f"v_cvt_pk_bf16_f32 v{vX+t}, v{vX+t}, v{vX+t}")
        for r in range(4):
            e(f"v_mov_b32 v{vACC+r}, 0")
        self.stamp(2, vST)

        def abuild(n):
            t, cc = divmod(n, 4)
            a = vA + 4 * (n & 1)
            for r in range(4):
                e(f"v_and_b32_dpp v{a+r}, v{vX+t}, v{vM+r} row_newbcast:{cc} row_mask:0xf bank_mask:0xf")
        abuild(0)
        for n in range(36):
            a = vA + 4 * (n & 1)
            if n + 1 < 36:
                abuild(n + 1)
            else:
                e(f"v_and_b32 v{vT}, 1, v{vS}")
                e(f"v_lshlrev_b32 v{vT}, 4, v{vT}")
                e(f"v_lshl_add_u32 v{vT}, v{vC}, 5, v{vT}")
                e(f"s_lshl_b32 s{sT1}, s{sHW}, 9")
                e(f"v_add_u32 v{vT}, s{sT1}, v{vT}")
            e(f"s_waitcnt vmcnt({min(dq-1, 35-n)})")
            e(f"v_mfma_f32_16x16x32_bf16 v[{vACC}:{vACC+3}], v[{a}:{a+3}], v[{vW+4*n}:{vW+4*n+3}], v[{vACC}:{vACC+3}]")
            if n + dq < 36:
                wqload(n + dq)
        e("s_nop 7")
        e(f"ds_write_b128 v{vT}, v[{vACC}:{vACC+3}] offset:{QP}")
        e(f"v_mov_b32 v{vU}, 64")
        e(f"ds_write_b32 v{vU}, v{vU} offset:{FL-64}")
        e("s_waitcnt lgkmcnt(0)")
        self.stamp(3, vST)
        if o["touch"]:
            e(f"s_lshl_b32 s{sOFF}, s{sHW}, 18")
            e(f"buffer_load_dword v{vU}, off, s[{RC}:{RC+3}], s{sOFF} nt")
        e("s_barrier")
        self.stamp(4, vST)

        self.c("descriptors for the hand-off buffers")
        self.srd(RD, sWS, P_OFF, None, 256 * 2304)
        self.srd(RE, sDBG, None, None, 256)
        vPO, vPO2 = 5, 6
        self.c("publish offsets: 512-B main region (lanes 0-31), 64-B tail region (lanes 0-15)")
        e(f"s_mul_i32 s{sT0}, s{sID}, 2304")
        e(f"s_lshl_b32 s{sT1}, s{sHW}, 9")
        e(f"s_add_u32 s{sT1}, s{sT1}, s{sT0}")
        e(f"v_lshlrev_b32 v{vPO}, 4, v0")
        e(f"v_add_u32 v{vPO}, s{sT1}, v{vPO}")
        e(f"s_lshl_b32 s{sT1}, s{sHW}, 6")
        e(f"s_add_u32 s{sT1}, s{sT1}, s{sT0}")
        e(f"s_add_u32 s{sT1}, s{sT1}, 2048")
        e(f"v_lshlrev_b32 v{vPO2}, 2, v0")
        e(f"v_add_u32 v{vPO2}, s{sT1}, v{vPO2}")
        self.c("one wave per row b marks the row's 32 slots empty, then counts itself in")
        e(f"s_cmp_lg_u32 s{sHW}, 1")
        e("s_cbranch_scc1 L_noclear")
        e(f"s_cmp_lg_u32 s{sH}, 31")
        e("s_cbranch_scc1 L_noclear")
        for r in range(4):
            e(f"v_mov_b32 v{vACC+r}, -1")
        e(f"v_lshlrev_b32 v{vT}, 4, v0")
        e(f"s_mul_i32 s{sOFF}, s{sB}, {32*2304}")
        e(f"s_mov_b32 s{sCNT}, 18")
        self.lab("L_clear")
        for k in range(0 if o["noclear"] else 4):
            e(f"buffer_store_dwordx4 v[{vACC}:{vACC+3}], v{vT}, s[{RD}:{RD+3}], s{sOFF} offen offset:{1024*k} {o['pol_clear']}")
        e(f"s_add_u32 s{sOFF}, s{sOFF}, 4096")
        e("s_waitcnt vmcnt(4)")
        e(f"s_sub_u32 s{sCNT}, s{sCNT}, 1")
        e(f"s_cmp_lg_u32 s{sCNT}, 0")
        e("s_cbranch_scc1 L_clear")
        e("s_waitcnt vmcnt(0)")
        e(f"v_mov_b32 v{vT}, 1")
        e("s_mov_b64 exec, 1")
        e(f"buffer_atomic_add v{vT}, off, s[{RE}:{RE+3}], 0 sc1")
        e("s_mov_b64 exec, -1")
        self.lab("L_noclear")

        e(f"s_cmp_lg_u32 s{sHW}, 3")
        e("s_cbranch_scc1 L_nomlp")
        e(f"s_cmp_ge_u32 s2, {NMLP}")
        e("s_cbranch_scc1 L_nomlp")
        if not o["nomlp"]:
            self.mlp(vS, vC)
        self.lab("L_nomlp")
        self.stamp(5, vST)

        self.c("wo rows of head h, columns 144 hw .. +144, as B fragments")
        vF = 112
        vL, vL2 = 64, 96
        vO1, vO2 = 3, 4
        e(f"s_mul_i32 s{sT0}, s{sH}, {128*1152}")
        self.srd(RB, sWO, f"s{sT0}", None, 128 * 1152)
        e(f"v_mul_u32_u24 v{vO1}, 9216, v{vS}")
        e(f"s_mul_i32 s{sT1}, s{sHW}, 288")
        e(f"v_add_u32 v{vO1}, s{sT1}, v{vO1}")
        e(f"v_lshl_add_u32 v{vO2}, v{vC}, 1, v{vO1}")
        e(f"v_add_u32 v{vO2}, 256, v{vO2}")
        e(f"v_lshl_add_u32 v{vO1}, v{vC}, 4, v{vO1}")
        for kb in range(0 if o["nowo"] else 4):
            for ee in range(8):
                if ee % 4 == 0:
                    e(f"s_mov_b32 s{sOFF}, {(32*kb+ee)*1152}")
                if ee >= o["d_wo"]:
                    e(f"s_waitcnt vmcnt({2*o['d_wo']-2})")
                e(f"buffer_load_dwordx4 v[{vL+4*ee}:{vL+4*ee+3}], v{vO1}, s[{RB}:{RB+3}], s{sOFF} offen offset:{(ee%4)*1152} {o['pol_wo']}")
                e(f"buffer_load_ushort v{vL2+ee}, v{vO2}, s[{RB}:{RB+3}], s{sOFF} offen offset:{(ee%4)*1152} {o['pol_wo']}")
            e("s_waitcnt vmcnt(0)")
            self.transpose(vF + 36 * kb, vL)
            for r in range(4):
                e(f"v_perm_b32 v{vF+36*kb+32+r}, v{vL2+2*r+1}, v{vL2+2*r}, s{sPLO}")
        self.stamp(6, vST)

        vG, vXV, vCOL, vPL = 7, 8, 9, 10
        e(f"s_cmp_lg_u32 s{sHW}, 0")
        e("s_cbranch_scc1 L_nopre")
        self.wait_ready()
        e(f"s_cmp_ge_u32 s{sH}, 18")
        e("s_cbranch_scc1 L_nopre")
        self.consumer_pre(vG, vXV, vCOL, vPL)
        self.lab("L_nopre")
        self.stamp(7, vST)

        vAO, vZ = 3, 4
        vAF = 64
        vMM, vLL = 80, 84
        vAC = 32
        vAC9 = 20
        vVAL = 88
        e(f"v_and_b32 v{vAO}, 3, v0")
        e(f"v_mul_u32_u24 v{vAO}, {OTS}, v{vAO}")
        e(f"v_lshl_add_u32 v{vAO}, v{vS}, 4, v{vAO}")
        e(f"v_mov_b32 v{vZ}, 0")
        e("s_mov_b32 vcc_lo, 0xffff0000")
        e("s_mov_b32 vcc_hi, 0xffff0000")
        e("s_barrier")
        self.stamp(8, vST)
        e(f"ds_read_b128 v[{vAF}:{vAF+3}], v{vAO} offset:{OT}")
        e(f"ds_read_b128 v[{vMM}:{vMM+3}], v{vZ} offset:{ST}")
        e(f"ds_read_b128 v[{vLL}:{vLL+3}], v{vZ} offset:{ST+16}")
        for kb in range(1, 4):
            e(f"ds_read_b128 v[{vAF+4*kb}:{vAF+4*kb+3}], v{vAO} offset:{OT+64*kb}")
        acc = lambda u: (vAC + 4 * u) if u < 8 else vAC9
        fill = []
        fill.append(f"v_max_f32 v{vT}, v{vMM}, v{vMM+1}")
        fill.append(f"v_max3_f32 v{vT}, v{vT}, v{vMM+2}, v{vMM+3}")
        for r in range(4):
            fill.append(f"v_sub_f32 v{vMM+r}, v{vMM+r}, v{vT}")
        for r in range(4):
            fill.append(f"v_mul_f32 v{vMM+r}, {f32(1.4426950408889634)}, v{vMM+r}")
        for r in range(4):
            fill.append(f"v_exp_f32 v{vMM+r}, v{vMM+r}")
        fill.append(f"v_mul_f32 v{vT}, v{vMM}, v{vLL}")
        for r in range(1, 4):
            fill.append(f"v_fmac_f32 v{vT}, v{vMM+r}, v{vLL+r}")
        fill.append(f"v_rcp_f32 v{vT}, v{vT}")
        fill.append("s_nop 0")
        for r in range(4):
            fill.append(f"v_mul_f32 v{vMM+r}, v{vMM+r}, v{vT}")
        for kb in range(4):
            e(f"s_waitcnt lgkmcnt({[5,2,1,0][kb]})")
            for u in range(9):
                a = acc(u)
                cin = "0" if kb == 0 else f"v[{a}:{a+3}]"
                f = vF + 36 * kb + 4 * u
                e(f"v_mfma_f32_16x16x32_bf16 v[{a}:{a+3}], v[{vAF+4*kb}:{vAF+4*kb+3}], v[{f}:{f+3}], {cin}")
                if kb >= 1 and fill:
                    e(fill.pop(0))
        assert not fill
        self.c("rows r of each result belong to streamer r; lanes 16-31 keep columns u = 4..7")
        e("s_nop 3")
        for k in range(4):
            for r in range(4):
                e(f"v_cndmask_b32 v{acc(k)+r}, v{acc(k)+r}, v{acc(4+k)+r}, vcc")
        for k in range(4):
            e(f"v_mul_f32 v{vVAL+k}, v{acc(k)}, v{vMM}")
        e(f"v_mul_f32 v{vVAL+4}, v{vAC9}, v{vMM}")
        for r in range(1, 4):
            for k in range(4):
                e(f"v_fmac_f32 v{vVAL+k}, v{acc(k)+r}, v{vMM+r}")
            e(f"v_fmac_f32 v{vVAL+4}, v{vAC9+r}, v{vMM+r}")
        e("s_mov_b32 exec_hi, 0")
        e(f"buffer_store_dwordx4 v[{vVAL}:{vVAL+3}], v{vPO}, s[{RD}:{RD+3}], 0 offen sc1")
        e("s_mov_b32 exec_lo, 0xffff")
        e(f"buffer_store_dword v{vVAL+4}, v{vPO2}, s[{RD}:{RD+3}], 0 offen sc1")
        e("s_mov_b64 exec, -1")
        self.stamp(9, vST)
        e(f"s_cmp_lg_u32 s{sHW}, 0")
        e("s_cbranch_scc1 L_hend")
        e(f"s_cmp_ge_u32 s{sH}, 18")
        e("s_cbranch_scc1 L_hend")
        self.consumer_final(vG, vXV, vCOL, vPL)
        self.lab("L_hend")
        self.stamp(10, vST)
        self.stamp_flush(vST, vT)
        e("s_endpgm")

    def ln_finish(self, vMEAN, vVAR, vT):
        e = self.e
        e(f"v_mul_f32 v{vVAR}, {f32(1/576)}, v{vVAR}")
        self.rbf(vMEAN, vMEAN)
        self.rbf(vVAR, vVAR)
        e(f"v_add_f32 v{vVAR}, {f32(1e-5)}, v{vVAR}")
        self.rbf(vVAR, vVAR)
        e(f"v_sqrt_f32 v{vVAR}, v{vVAR}")
        e("s_nop 0")
        self.rbf(vVAR, vVAR)
        e(f"v_rcp_f32 v{vT}, v{vVAR}")
        e("s_nop 0")

    def divide(self, dst, num, den, rcp, tmp):
        e = self.e
        e(f"v_mul_f32 v{dst}, v{num}, v{rcp}")
        e(f"v_fma_f32 v{tmp}, -v{dst}, v{den}, v{num}")
        e(f"v_fmac_f32 v{dst}, v{tmp}, v{rcp}")

    def transpose(self, dst, src):
        for m in range(4):
            for r in range(4):
                lo, hi = src + 8 * r + m, src + 8 * r + 4 + m
                self.e(f"v_perm_b32 v{dst+8*m+r}, v{hi}, v{lo}, s{sPLO}")
                self.e(f"v_perm_b32 v{dst+8*m+4+r}, v{hi}, v{lo}, s{sPHI}")

    def sigmoid_mul(self, dst, x, arg, t):
        e = self.e
        e(f"v_exp_f32 v{t}, v{arg}")
        e("s_nop 0")
        e(f"v_add_f32 v{t}, 1.0, v{t}")
        e(f"v_rcp_f32 v{t}, v{t}")
        e("s_nop 0")
        e(f"v_mul_f32 v{dst}, v{x}, v{t}")

    def mlp(self, vS, vC):
        o = self.o
        e = self.e
        pol = o["pol_mlp"]
        vT, vU, vMEAN, vVAR, vV, vW = 24, 25, 26, 27, 28, 29
        vO, vLA, vB1 = 3, 4, 8
        vX = 64
        vL = [64, 96]
        vF = 128
        vAC = 160
        vAF = 192
        vOUT = 208
        self.c("layer norm of all rows: lane l holds row l >> 3, chunks (l & 7) + 8 t")
        self.srd(RA, sX, None, None, 8 * 1152)
        e(f"v_lshrrev_b32 v{vT}, 3, v0")
        e(f"v_and_b32 v{vU}, 7, v0")
        e(f"v_lshlrev_b32 v{vU}, 4, v{vU}")
        e(f"v_mul_u32_u24 v{vO}, 1152, v{vT}")
        e(f"v_add_u32 v{vO}, v{vO}, v{vU}")
        e(f"v_mul_u32_u24 v{vLA}, {XTS}, v{vT}")
        e(f"v_add_u32 v{vLA}, v{vLA}, v{vU}")
        for t in range(9):
            e(f"buffer_load_dwordx4 v[{vX+4*t}:{vX+4*t+3}], v{vO}, s[{RA}:{RA+3}], 0 offen offset:{128*t}")
        e(f"s_lshl_b32 s{sT0}, s2, 8")
        self.srd(RA, sB1, f"s{sT0}", None, 256)
        e(f"v_lshlrev_b32 v{vU}, 4, v{vC}")
        e(f"buffer_load_dwordx4 v[{vB1}:{vB1+3}], v{vU}, s[{RA}:{RA+3}], 0 offen")
        e(f"v_mov_b32 v{vMEAN}, 0")
        e(f"v_mov_b32 v{vVAR}, 0")
        e("s_waitcnt vmcnt(1)")
        for k in range(36):
            e(f"v_lshlrev_b32 v{vT}, 16, v{vX+k}")
            e(f"v_and_b32 v{vU}, 0xffff0000, v{vX+k}")
            e(f"v_add_f32 v{vMEAN}, v{vMEAN}, v{vT}")
            e(f"v_add_f32 v{vVAR}, v{vVAR}, v{vU}")
        e(f"v_add_f32 v{vMEAN}, v{vMEAN}, v{vVAR}")

        def red8(v):
            for mod in ("quad_perm:[1,0,3,2]", "quad_perm:[2,3,0,1]", "row_half_mirror"):
                e("s_nop 1")
                e(f"v_add_f32_dpp v{v}, v{v}, v{v} {mod} row_mask:0xf bank_mask:0xf")
        red8(vMEAN)
        e(f"v_mul_f32 v{vMEAN}, {f32(1/576)}, v{vMEAN}")
        e(f"v_mov_b32 v{vVAR}, 0")
        for k in range(36):
            e(f"v_lshlrev_b32 v{vT}, 16, v{vX+k}")
            e(f"v_and_b32 v{vU}, 0xffff0000, v{vX+k}")
            e(f"v_sub_f32 v{vT}, v{vT}, v{vMEAN}")
            e(f"v_sub_f32 v{vU}, v{vU}, v{vMEAN}")
            e(f"v_fmac_f32 v{vVAR}, v{vT}, v{vT}")
            e(f"v_fmac_f32 v{vVAR}, v{vU}, v{vU}")
        red8(vVAR)
        vRC = 30
        self.ln_finish(vMEAN, vVAR, vRC)
        for k in range(36):
            e(f"v_lshlrev_b32 v{vT}, 16, v{vX+k}")
            e(f"v_and_b32 v{vU}, 0xffff0000, v{vX+k}")
            e(f"v_sub_f32 v{vT}, v{vT}, v{vMEAN}")
            e(f"v_sub_f32 v{vU}, v{vU}, v{vMEAN}")
            e(f"v_cvt_pk_bf16_f32 v{vU}, v{vT}, v{vU}")
            e(f"v_lshlrev_b32 v{vT}, 16, v{vU}")
            e(f"v_and_b32 v{vU}, 0xffff0000, v{vU}")
            self.divide(vV, vT, vVAR, vRC, vW)
            self.divide(vT, vU, vVAR, vRC, vW)
            e(f"v_cvt_pk_bf16_f32 v{vX+k}, v{vV}, v{vT}")
        for t in range(9):
            e(f"ds_write_b128 v{vLA}, v[{vX+4*t}:{vX+4*t+3}] offset:{XT+128*t}")
        e("s_waitcnt lgkmcnt(0)")

        self.stamp(11, 31)
        self.c("h = xn @ w1[:, 128 f .. +128]")
        e(f"s_lshl_b32 s{sT0}, s2, 8")
        self.srd(RA, sW1, f"s{sT0}", None, 0)
        e(f"s_sub_u32 s{RA+2}, {576*9216}, s{sT0}")
        e(f"v_mul_u32_u24 v{vO}, {8*9216}, v{vS}")
        e(f"v_lshl_add_u32 v{vO}, v{vC}, 4, v{vO}")
        e(f"v_and_b32 v{vLA}, 7, v0")
        e(f"v_mul_u32_u24 v{vLA}, {XTS}, v{vLA}")
        e(f"v_lshl_add_u32 v{vLA}, v{vS}, 4, v{vLA}")
        for k in range(32):
            e(f"v_mov_b32 v{vAC+k}, 0")

        def loads1(buf):
            for ee in range(8):
                if o["d_mlp"] < 16:
                    e(f"s_waitcnt vmcnt({o['d_mlp']-1})")
                e(f"buffer_load_dwordx4 v[{vL[buf]+4*ee}:{vL[buf]+4*ee+3}], v{vO}, s[{RA}:{RA+3}], s{sOFF} offen {pol}")
                e(f"s_add_u32 s{sOFF}, s{sOFF}, {9216 if ee < 7 else 25*9216}")

        def mmas(a, first=False):
            e("s_nop 0")
            for u in range(8):
                c = "0" if first else f"v[{vAC+4*u}:{vAC+4*u+3}]"
                e(f"v_mfma_f32_16x16x32_bf16 v[{vAC+4*u}:{vAC+4*u+3}], v[{a}:{a+3}], v[{vF+4*u}:{vF+4*u+3}], {c}")

        e(f"s_mov_b32 s{sOFF}, 0")
        loads1(0)
        e(f"s_mov_b32 s{sCNT}, 9")
        self.lab("L_g1")
        for half in range(2):
            loads1(1 - half)
            e(f"ds_read_b128 v[{vAF}:{vAF+3}], v{vLA} offset:{XT+64*half}")
            e("s_waitcnt vmcnt(8)")
            self.transpose(vF, vL[half])
            e("s_waitcnt lgkmcnt(0)")
            mmas(vAF)
        e(f"v_add_u32 v{vLA}, 128, v{vLA}")
        e(f"s_sub_u32 s{sCNT}, s{sCNT}, 1")
        e(f"s_cmp_lg_u32 s{sCNT}, 0")
        e("s_cbranch_scc1 L_g1")
        e("s_waitcnt vmcnt(0)")

        self.stamp(12, 31)
        self.c("second matrix: rows 128 f .. +128 of w2, first block in flight under the activation")
        e(f"s_mul_i32 s{sT0}, s2, {128*1152}")
        self.srd(RA, sW2, f"s{sT0}", None, 128 * 1152)
        e(f"v_mul_u32_u24 v{vO}, 9216, v{vS}")
        e(f"v_lshl_add_u32 v{vO}, v{vC}, 4, v{vO}")

        def loads2(buf, kb):
            for ee in range(8):
                if ee % 4 == 0:
                    e(f"s_add_u32 s{sT1}, s{sOFF}, {(32*kb+ee)*1152}")
                if o["d_mlp"] < 16:
                    e(f"s_waitcnt vmcnt({o['d_mlp']-1})")
                e(f"buffer_load_dwordx4 v[{vL[buf]+4*ee}:{vL[buf]+4*ee+3}], v{vO}, s[{RA}:{RA+3}], s{sT1} offen offset:{(ee%4)*1152} {pol}")
        e(f"s_mov_b32 s{sOFF}, 0")
        loads2(0, 0)

        self.c("lanes 32-63 take columns u = 4..7; bias, gelu, store to the h table")
        e(f"s_mov_b32 s{sMSK}, 0")
        e(f"s_mov_b32 s{sMSK+1}, -1")
        for k in range(16):
            e(f"v_cndmask_b32 v{vAC+k}, v{vAC+k}, v{vAC+16+k}, s[{sMSK}:{sMSK+1}]")
        e(f"v_cndmask_b32 v{vB1}, v{vB1}, v{vB1+2}, s[{sMSK}:{sMSK+1}]")
        e(f"v_cndmask_b32 v{vB1+1}, v{vB1+1}, v{vB1+3}, s[{sMSK}:{sMSK+1}]")
        vBB = 12
        e(f"v_lshlrev_b32 v{vBB}, 16, v{vB1}")
        e(f"v_and_b32 v{vBB+1}, 0xffff0000, v{vB1}")
        e(f"v_lshlrev_b32 v{vBB+2}, 16, v{vB1+1}")
        e(f"v_and_b32 v{vBB+3}, 0xffff0000, v{vB1+1}")
        c1 = -2.0 * 0.7978845608028654 * 1.4426950408889634
        e(f"s_mov_b32 s{sT1}, {f32(c1)}")
        e(f"s_mov_b32 s{sT2}, {f32(c1 * 0.044715)}")
        e(f"v_mov_b32 v{vW}, s{sT1}")
        for u in range(4):
            for r in range(4):
                a = vAC + 4 * u + r
                self.rbf(a, a)
                e(f"v_add_f32 v{a}, v{a}, v{vBB+u}")
                self.rbf(a, a)
                e(f"v_mul_f32 v{vT}, v{a}, v{a}")
                e(f"v_fma_f32 v{vT}, v{vT}, s{sT2}, v{vW}")
                e(f"v_mul_f32 v{vT}, v{vT}, v{a}")
                self.sigmoid_mul(a, a, vT, vU)
        e(f"v_and_b32 v{vT}, 1, v{vS}")
        e(f"v_mul_u32_u24 v{vT}, {4*HTS}, v{vT}")
        e(f"v_lshl_add_u32 v{vT}, v{vC}, 4, v{vT}")
        e(f"v_lshrrev_b32 v{vU}, 1, v{vS}")
        e(f"v_lshl_add_u32 v{vT}, v{vU}, 3, v{vT}")
        for r in range(4):
            e(f"v_cvt_pk_bf16_f32 v{vOUT+2*r}, v{vAC+r}, v{vAC+4+r}")
            e(f"v_cvt_pk_bf16_f32 v{vOUT+2*r+1}, v{vAC+8+r}, v{vAC+12+r}")
            e(f"ds_write_b64 v{vT}, v[{vOUT+2*r}:{vOUT+2*r+1}] offset:{HT+r*HTS}")
        e(f"v_and_b32 v{vLA}, 7, v0")
        e(f"v_mul_u32_u24 v{vLA}, {HTS}, v{vLA}")
        e(f"v_lshl_add_u32 v{vLA}, v{vS}, 4, v{vLA}")
        e("s_waitcnt lgkmcnt(0)")
        for kb in range(4):
            e(f"ds_read_b128 v[{vAF+4*kb}:{vAF+4*kb+3}], v{vLA} offset:{HT+64*kb}")
        self.c("partial sums go to M[f][row][column]")
        e(f"s_mul_i32 s{sT0}, s2, {8*2304}")
        e(f"s_add_u32 s{sT0}, s{sT0}, {M_OFF}")
        self.srd(RC, sWS, f"s{sT0}", None, 8 * 2304)
        vSO = 16
        e(f"v_and_b32 v{vSO}, 1, v{vS}")
        e(f"v_mul_u32_u24 v{vSO}, {4*2304}, v{vSO}")
        e(f"v_lshl_add_u32 v{vSO}, v{vC}, 5, v{vSO}")
        e(f"v_lshl_add_u32 v{vSO}, v{vU}, 4, v{vSO}")
        e(f"v_add_u32 v{vSO+1}, {2*2304}, v{vSO}")
        e("s_waitcnt lgkmcnt(0)")
        e("s_waitcnt vmcnt(0)")
        self.stamp(13, 31)
        e(f"s_mov_b32 s{sCNT}, 0")
        self.lab("L_g2")
        for kb in range(4):
            if kb == 3:
                self.c("next column block; lanes past column 575 and the block past the last one fall out of range")
                e(f"s_add_u32 s{sOFF}, s{sOFF}, 256")
                e(f"s_cmp_eq_u32 s{sCNT}, 3")
                e(f"s_cselect_b32 s{sT1}, 0x200000, 0")
                e(f"v_bfe_u32 v{vT}, v0, 3, 1")
                e(f"v_mul_u32_u24 v{vT}, s{sT1}, v{vT}")
                e(f"v_add_u32 v{vO}, v{vO}, v{vT}")
                e(f"s_cmp_eq_u32 s{sCNT}, 4")
                e(f"s_cselect_b32 s{sOFF}, 0x200000, s{sOFF}")
            loads2((kb + 1) & 1, (kb + 1) & 3)
            e(f"s_waitcnt vmcnt({12 if kb == 0 else 8})")
            self.transpose(vF, vL[kb & 1])
            e("s_nop 0")
            mmas(vAF + 4 * kb, first=(kb == 0))
        e("s_nop 7")
        for r in range(4):
            for k in range(4):
                e(f"v_cndmask_b32 v{vOUT+4*r+k}, v{vAC+4*k+r}, v{vAC+16+4*k+r}, s[{sMSK}:{sMSK+1}]")
        e(f"s_lshl_b32 s{sT1}, s{sCNT}, 9")
        e(f"s_cmp_eq_u32 s{sCNT}, 4")
        e("s_cselect_b32 exec_lo, 0x00ff00ff, -1")
        e("s_cselect_b32 exec_hi, 0x00ff00ff, -1")
        for r in range(4):
            e(f"buffer_store_dwordx4 v[{vOUT+4*r}:{vOUT+4*r+3}], v{vSO+(r>>1)}, s[{RC}:{RC+3}], s{sT1} offen offset:{(r&1)*2304} sc1")
        e("s_mov_b64 exec, -1")
        e(f"s_add_u32 s{sCNT}, s{sCNT}, 1")
        e(f"s_cmp_lg_u32 s{sCNT}, 5")
        e("s_cbranch_scc1 L_g2")
        e("s_waitcnt vmcnt(0)")
        e(f"v_mov_b32 v{vT}, 1")
        e("s_mov_b64 exec, 1")
        e(f"buffer_atomic_add v{vT}, off, s[{RE}:{RE+3}], 0 sc1")
        e("s_mov_b64 exec, -1")

    def treduce(self, v):
        e = self.e
        e("s_nop 1")
        e(f"v_permlane32_swap_b32 v{v}, v{v+1}")
        e(f"v_permlane32_swap_b32 v{v+2}, v{v+3}")
        e("s_nop 0")
        e(f"v_add_f32 v{v}, v{v}, v{v+1}")
        e(f"v_add_f32 v{v+2}, v{v+2}, v{v+3}")
        e("s_nop 1")
        e(f"v_permlane16_swap_b32 v{v}, v{v+2}")
        e("s_nop 1")
        e(f"v_add_f32 v{v}, v{v}, v{v+2}")
        e("s_nop 1")
        e(f"v_add_f32_dpp v{v}, v{v}, v{v} row_ror:8 row_mask:0xf bank_mask:0xf")

    def wait_ready(self):
        e = self.e
        vT = 24
        self.c("wait for streamer 0 to reach its V phase (LDS word), then for the global counter:")
        self.c("every slot marked empty and every MLP unit published")
        e(f"v_mov_b32 v{vT+1}, 0")
        self.lab("L_mid_poll")
        e("s_sleep 16")
        e(f"ds_read_b32 v{vT}, v{vT+1} offset:{FL}")
        e("s_waitcnt lgkmcnt(0)")
        e(f"v_readfirstlane_b32 s{sT0}, v{vT}")
        e(f"s_cmp_gt_u32 s{sT0}, {self.o['fl_iter']}")
        e("s_cbranch_scc1 L_mid_poll")
        e(f"s_mov_b32 s{sSP}, 0x40000")
        self.lab("L_pre_poll")
        e(f"buffer_load_dword v{vT}, off, s[{RE}:{RE+3}], 0 sc1")
        e("s_waitcnt vmcnt(0)")
        e(f"v_readfirstlane_b32 s{sT0}, v{vT}")
        e(f"s_cmp_ge_u32 s{sT0}, {8+(0 if self.o['nomlp'] else NMLP)}")
        e("s_cbranch_scc1 L_pre_go")
        e(f"s_sleep {self.o['pre_sleep']}")
        e(f"s_sub_u32 s{sSP}, s{sSP}, 1")
        e(f"s_cmp_lg_u32 s{sSP}, 0")
        e("s_cbranch_scc1 L_pre_poll")
        self.lab("L_pre_go")

    def consumer_pre(self, vG, vXV, vCOL, vPL):
        e = self.e
        vT, vU, vCH, vGR, vMO = 24, 25, 26, 27, 28
        vB = 64
        self.c("this wave finishes 32 output columns of row b: line h of every partial")
        e(f"v_and_b32 v{vCH}, 7, v0")
        e(f"v_lshrrev_b32 v{vGR}, 3, v0")
        e(f"s_cmp_ge_u32 s{sH}, 16")
        e("s_cbranch_scc1 L_coltail")
        e(f"s_lshr_b32 s{sT0}, s{sH}, 2")
        e(f"s_mul_i32 s{sT0}, s{sT0}, 144")
        e(f"s_and_b32 s{sT1}, s{sH}, 1")
        e(f"s_lshl_b32 s{sT1}, s{sT1}, 6")
        e(f"s_add_u32 s{sT0}, s{sT0}, s{sT1}")
        e(f"s_and_b32 s{sT1}, s{sH}, 2")
        e(f"s_lshl_b32 s{sT1}, s{sT1}, 1")
        e(f"s_add_u32 s{sT0}, s{sT0}, s{sT1}")
        e(f"v_lshlrev_b32 v{vCOL}, 3, v{vCH}")
        e(f"v_add_u32 v{vCOL}, s{sT0}, v{vCOL}")
        e("s_branch L_coldone")
        self.lab("L_coltail")
        e(f"s_sub_u32 s{sT0}, s{sH}, 16")
        e(f"s_mul_i32 s{sT0}, s{sT0}, 288")
        e(f"s_add_u32 s{sT0}, s{sT0}, 128")
        e(f"v_lshrrev_b32 v{vT}, 2, v{vCH}")
        e(f"v_mul_u32_u24 v{vT}, 144, v{vT}")
        e(f"v_and_b32 v{vU}, 3, v{vCH}")
        e(f"v_lshl_add_u32 v{vCOL}, v{vU}, 2, v{vT}")
        e(f"v_add_u32 v{vCOL}, s{sT0}, v{vCOL}")
        self.lab("L_coldone")
        e(f"v_mul_u32_u24 v{vMO}, {8*2304}, v{vGR}")
        e(f"v_lshl_add_u32 v{vMO}, v{vCOL}, 2, v{vMO}")
        e(f"s_mul_i32 s{sT0}, s{sB}, 2304")
        e(f"v_add_u32 v{vMO}, s{sT0}, v{vMO}")
        e(f"v_mul_u32_u24 v{vPL}, 2304, v{vGR}")
        e(f"v_lshl_add_u32 v{vPL}, v{vCH}, 4, v{vPL}")
        e(f"s_mul_i32 s{sT0}, s{sB}, {32*2304}")
        e(f"s_lshl_b32 s{sT1}, s{sH}, 7")
        e(f"s_add_u32 s{sT0}, s{sT0}, s{sT1}")
        e(f"v_add_u32 v{vPL}, s{sT0}, v{vPL}")
        self.c("column of this lane after the reduction, in bytes of bf16")
        e(f"v_bfe_u32 v{vT}, v0, 5, 1")
        e(f"v_bfe_u32 v{vU}, v0, 4, 1")
        e(f"v_lshl_add_u32 v{vT}, v{vU}, 1, v{vT}")
        e(f"v_add_u32 v{vCOL}, v{vCOL}, v{vT}")
        e(f"v_lshlrev_b32 v{vCOL}, 1, v{vCOL}")
        e(f"s_mul_i32 s{sT0}, s{sB}, 1152")
        self.srd(RA, sX, f"s{sT0}", None, 1152)
        e(f"buffer_load_ushort v{vXV}, v{vCOL}, s[{RA}:{RA+3}], 0 offen")
        self.srd(RB, sB2, None, None, 1152)
        e(f"buffer_load_ushort v{vG}, v{vCOL}, s[{RB}:{RB+3}], 0 offen")
        self.srd(RC, sWS, M_OFF, None, NMLP * 8 * 2304)
        for t in range(0 if self.o["nopre"] else 5):
            e(f"s_mov_b32 s{sOFF}, {8*t*8*2304}")
            e(f"buffer_load_dwordx4 v[{vB+4*t}:{vB+4*t+3}], v{vMO}, s[{RC}:{RC+3}], s{sOFF} offen sc1")
        e(f"s_mul_i32 s{sT0}, s{sB}, 1152")
        self.srd(RA, sOUT, f"s{sT0}", None, 1152)
        e("s_waitcnt vmcnt(0)")
        e(f"v_lshlrev_b32 v{vXV}, 16, v{vXV}")
        e(f"v_lshlrev_b32 v{vG}, 16, v{vG}")
        for t in range(1, 5):
            for k in range(4):
                e(f"v_add_f32 v{vB+k}, v{vB+k}, v{vB+4*t+k}")
        self.treduce(vB)
        self.rbf(vB, vB)
        e(f"v_add_f32 v{vB}, v{vB}, v{vG}")
        self.rbf(vB, vB)
        e(f"v_mul_f32 v{vT}, {f32(-1.4426950408889634)}, v{vB}")
        self.sigmoid_mul(vG, vB, vT, vU)
        self.rbf(vG, vG)

    def consumer_final(self, vG, vXV, vCOL, vPL):
        e = self.e
        vB, vT = 64, 24
        for t in range(1, 4):
            e(f"s_mov_b32 s{sT0+t-1}, {8*t*2304}")
        e(f"s_mov_b32 s{sSP}, 0x100000")
        self.lab("L_fin_poll")
        for t in range(4):
            so = "0" if t == 0 else f"s{sT0+t-1}"
            e(f"buffer_load_dwordx4 v[{vB+4*t}:{vB+4*t+3}], v{vPL}, s[{RD}:{RD+3}], {so} offen sc1")
        e("s_waitcnt vmcnt(0)")
        e(f"v_max_u32 v{vT}, v{vB}, v{vB+1}")
        for k in range(1, 8):
            e(f"v_max3_u32 v{vT}, v{vT}, v{vB+2*k}, v{vB+2*k+1}")
        e(f"v_cmp_eq_u32 vcc, -1, v{vT}")
        e(f"s_sub_u32 s{sSP}, s{sSP}, 1")
        e("s_cbranch_vccz L_fin_go")
        e(f"s_cmp_lg_u32 s{sSP}, 0")
        e("s_cbranch_scc1 L_fin_poll")
        self.lab("L_fin_go")
        for k in range(4):
            e(f"v_add_f32 v{vB+k}, v{vB+k}, v{vB+4+k}")
            e(f"v_add_f32 v{vB+8+k}, v{vB+8+k}, v{vB+12+k}")
        for k in range(4):
            e(f"v_add_f32 v{vB+k}, v{vB+k}, v{vB+8+k}")
        self.treduce(vB)
        self.rbf(vB, vB)
        e(f"v_mul_f32 v{vB}, v{vB}, v{vG}")
        self.rbf(vB, vB)
        e(f"v_add_f32 v{vB}, v{vB}, v{vXV}")
        e(f"v_cvt_pk_bf16_f32 v{vB}, v{vB}, v{vB}")
        e("s_mov_b32 exec_lo, 0x00ff00ff")
        e("s_mov_b32 exec_hi, 0x00ff00ff")
        e(f"buffer_store_short v{vB}, v{vCOL}, s[{RA}:{RA+3}], 0 offen")
        e("s_mov_b64 exec, -1")

    def build(self, header):
        e = self.e
        self.L.extend(header)
        self.L.append(f"; @launch grid=(256,1,1) block=(512,1,1) lds={KB + 131072 if self.o['ldsk'] else LDS_SMALL}")
        self.L.append('.amdgcn_target "amdgcn-amd-amdhsa--gfx950"')
        self.L.append(".text")
        self.L.append(f".globl {NAME}_kernel")
        self.L.append(".p2align 8")
        self.L.append(f".type {NAME}_kernel,@function")
        self.lab(f"{NAME}_kernel")
        e("s_cmp_ge_u32 s2, 256")
        e("s_cbranch_scc1 L_exit")
        e("s_load_dwordx16 s[8:23], s[0:1], 0")
        e("s_load_dwordx8 s[24:31], s[0:1], 64")
        e("s_load_dwordx2 s[32:33], s[0:1], 96")
        e("v_lshrrev_b32 v1, 6, v0")
        e("v_and_b32 v0, 63, v0")
        e(f"v_readfirstlane_b32 s{sWAVE}, v1")
        e(f"s_lshr_b32 s{sB}, s2, 5")
        if self.o["hmap"]:
            e(f"s_and_b32 s{sH}, s2, 7")
            e(f"s_lshl_b32 s{sH}, s{sH}, 2")
            e(f"s_bfe_u32 s{sID}, s2, 0x20003")
            e(f"s_add_u32 s{sH}, s{sH}, s{sID}")
        else:
            e(f"s_and_b32 s{sH}, s2, 31")
        e(f"s_lshl_b32 s{sID}, s{sB}, 5")
        e(f"s_add_u32 s{sID}, s{sID}, s{sH}")
        e(f"s_and_b32 s{sHW}, s{sWAVE}, 3")
        e(f"s_cmp_ge_u32 s{sWAVE}, 4")
        e("s_waitcnt lgkmcnt(0)")
        e("s_cbranch_scc1 L_stream")
        self.helper()
        self.streamer()
        self.lab("L_exit")
        e("s_endpgm")
        self.L.append('.section .rodata,"a"')
        self.L.append(".p2align 6")
        self.L.append(f".amdhsa_kernel {NAME}_kernel")
        for d in ("next_free_vgpr 256", "next_free_sgpr 80", "accum_offset 256",
                  "group_segment_fixed_size 0", "kernarg_size 104", "user_sgpr_count 2",
                  "user_sgpr_kernarg_segment_ptr 1", "system_sgpr_workgroup_id_x 1",
                  "float_denorm_mode_32 3"):
            self.L.append("  .amdhsa_" + d)
        self.L.append(".end_amdhsa_kernel")
        return "\n".join(self.L) + "\n"


def header():
    ref = open(f"cdna_kernels/{NAME}.s.ref").read().splitlines()
    return [l for l in ref if l.startswith(";") and "@launch" not in l]


def generate(**kw):
    return G(**kw).build(header())


if __name__ == "__main__":
    kw = {}
    out = f"cdna_kernels/{NAME}.s"
    for a in sys.argv[1:]:
        k, v = a.split("=", 1)
        if k == "out":
            out = v
        else:
            kw[k] = int(v) if v.lstrip("-").isdigit() else v
    open(out, "w").write(generate(**kw))
```

```python
import sys, struct

NAME = "recurrent_scan__mha_block_cached__dense_activation_gelu__decode"


def f32(x):
    return "0x%08x" % struct.unpack("<I", struct.pack("<f", x))[0]


DEFAULTS = dict(
    d_fill="6",
    d_k="5",
    d_klast="5",
    d_v="5",
    d_wq=5,
    d_wo=1,
    d_mlp=16,
    pol_kv="nt", pol_wq="", pol_wo="", pol_mlp="nt",
    fl_iter=4,
    rot=1,
    g1=14, g2=23,
    nowo=0, nomlp=0, noclear=0, nowq=0, nox=0,
    probe=-1, probe_wg=64,
    stamps=0,
)

QP = 0
OT = 2048
OTS = 288
ST = 3328
FL = 3360
XT = 4096
XTS = 1168
KB = 16384
LDS_BYTES = KB + 131072

P_OFF = 0
M_OFF = 256 * 2304
H_OFF = M_OFF + 64 * 2304
NCLR, CLR_KB = 32, 25
STAMP_OFF = 0x200000
assert H_OFF + 8 * 9216 <= NCLR * CLR_KB * 1024

sX, sK, sV, sWQ, sWO, sW1, sB1 = 8, 10, 12, 14, 16, 20, 22
sW2, sB2, sOUT, sDBG, sWS = 24, 26, 28, 30, 32
sWAVE, sB, sH, sHW = 3, 34, 35, 4
RA, RB, RC, RD = 36, 40, 44, 48
sU = 54
sROT = 84
sOFF, sCNT, sT0, sT1, sT2 = 56, 57, 58, 59, 60
sODD, sBIT1 = 62, 64
sPLO, sPHI, sDLO, sDHI = 66, 67, 68, 69
sMSK = 70
sTS = 72
sSP = 74
LOG2E = 1.4426950408889634


class G:
    def __init__(self, **kw):
        self.o = dict(DEFAULTS)
        for k in kw:
            assert k in self.o, k
        self.o.update(kw)
        self.L = []

    def e(self, s):
        self.L.append("    " + s)

    def lab(self, s):
        self.L.append(s + ":")

    def c(self, s):
        self.L.append("    ; " + s)

    def depth(self, key, n):
        p = str(self.o[key]).split(",")
        return int(p[n % len(p)])

    def srd(self, r, ptr, off=None, nrec=0):
        if off is None:
            self.e(f"s_mov_b32 s{r}, s{ptr}")
            self.e(f"s_and_b32 s{r+1}, s{ptr+1}, 0xffff")
        else:
            self.e(f"s_add_u32 s{r}, s{ptr}, {off}")
            self.e(f"s_addc_u32 s{r+1}, s{ptr+1}, 0")
            self.e(f"s_and_b32 s{r+1}, s{r+1}, 0xffff")
        self.e(f"s_mov_b32 s{r+2}, {nrec}")
        self.e(f"s_mov_b32 s{r+3}, 0x20000")

    def stamp(self, idx, vs):
        if self.o["probe"] == idx and vs == 31:
            self.e("s_memrealtime s[78:79]")
            self.e("s_waitcnt lgkmcnt(0)")
        if not self.o["stamps"]:
            return
        self.e(f"s_memrealtime s[{sTS}:{sTS+1}]")
        self.e("s_waitcnt lgkmcnt(0)")
        self.e(f"v_writelane_b32 v{vs}, s{sTS}, {idx}")

    def stamp_iter(self, base, vs):
        if not self.o["stamps"]:
            return
        self.e(f"s_memrealtime s[{sTS}:{sTS+1}]")
        self.e(f"s_sub_u32 m0, {base + 7}, s{sCNT}")
        self.e("s_waitcnt lgkmcnt(0)")
        self.e(f"v_writelane_b32 v{vs}, s{sTS}, m0")

    def stamp_flush(self, vs, vt):
        if not self.o["stamps"]:
            return
        self.e("s_mov_b64 exec, -1")
        self.e(f"s_getreg_b32 s{sT0}, hwreg(HW_REG_XCC_ID)")
        self.e(f"v_writelane_b32 v{vs}, s{sT0}, 31")
        self.e(f"s_lshl_b32 s{sT0}, s2, 3")
        self.e(f"s_add_u32 s{sT0}, s{sT0}, s{sWAVE}")
        self.e(f"s_lshl_b32 s{sT0}, s{sT0}, 8")
        self.e(f"s_add_u32 s{sT0}, s{sT0}, {STAMP_OFF}")
        self.e(f"v_lshlrev_b32 v{vt}, 2, v0")
        self.e(f"v_add_u32 v{vt}, s{sT0}, v{vt}")
        self.e(f"global_store_dword v{vt}, v{vs}, s[{sWS}:{sWS+1}]")
        self.e("s_waitcnt vmcnt(0)")

    def allreduce(self, op, v, t):
        for mod in ("quad_perm:[1,0,3,2]", "quad_perm:[2,3,0,1]", "row_half_mirror", "row_mirror"):
            self.e("s_nop 1")
            self.e(f"{op}_dpp v{v}, v{v}, v{v} {mod} row_mask:0xf bank_mask:0xf")
        for sw in ("v_permlane16_swap_b32", "v_permlane32_swap_b32"):
            self.e(f"v_mov_b32 v{t}, v{v}")
            self.e("s_nop 1")
            self.e(f"{sw} v{t}, v{v}")
            self.e("s_nop 1")
            self.e(f"{op} v{v}, v{v}, v{t}")

    def masks(self, vm, t0, t1):
        self.e(f"v_and_b32 v{t0}, 1, v0")
        self.e(f"v_lshlrev_b32 v{t0}, 4, v{t0}")
        self.e(f"v_mov_b32 v{t1}, 0xffff")
        self.e(f"v_lshlrev_b32 v{t0}, v{t0}, v{t1}")
        self.e(f"v_bfe_u32 v{t1}, v0, 1, 2")
        for r in range(4):
            self.e(f"v_cmp_eq_u32 vcc, {r}, v{t1}")
            self.e("s_nop 1")
            self.e(f"v_cndmask_b32 v{vm+r}, 0, v{t0}, vcc")

    def rbf(self, dst, src):
        self.e(f"v_cvt_pk_bf16_f32 v{dst}, v{src}, v{src}")
        self.e(f"v_and_b32 v{dst}, 0xffff0000, v{dst}")

    def ln_finish(self, vMEAN, vVAR, vT):
        e = self.e
        e(f"v_mul_f32 v{vVAR}, {f32(1/576)}, v{vVAR}")
        self.rbf(vMEAN, vMEAN)
        self.rbf(vVAR, vVAR)
        e(f"v_add_f32 v{vVAR}, {f32(1e-5)}, v{vVAR}")
        self.rbf(vVAR, vVAR)
        e(f"v_sqrt_f32 v{vVAR}, v{vVAR}")
        e("s_nop 0")
        self.rbf(vVAR, vVAR)
        e(f"v_rcp_f32 v{vT}, v{vVAR}")
        e("s_nop 0")

    def divide(self, dst, num, den, rcp, tmp):
        e = self.e
        e(f"v_mul_f32 v{dst}, v{num}, v{rcp}")
        e(f"v_fma_f32 v{tmp}, -v{dst}, v{den}, v{num}")
        e(f"v_fmac_f32 v{dst}, v{tmp}, v{rcp}")

    def transpose(self, dst, src, w):
        for m in range(w):
            for r in range(4):
                lo, hi = src + 2 * w * r + m, src + 2 * w * r + w + m
                self.e(f"v_perm_b32 v{dst+8*m+r}, v{hi}, v{lo}, s{sPLO}")
                self.e(f"v_perm_b32 v{dst+8*m+4+r}, v{hi}, v{lo}, s{sPHI}")

    def sigmoid_mul(self, dst, x, arg, t):
        e = self.e
        e(f"v_exp_f32 v{t}, v{arg}")
        e("s_nop 0")
        e(f"v_add_f32 v{t}, 1.0, v{t}")
        e(f"v_rcp_f32 v{t}, v{t}")
        e("s_nop 0")
        e(f"v_mul_f32 v{dst}, v{x}, v{t}")

    def treduce(self, v):
        e = self.e
        e("s_nop 1")
        e(f"v_permlane32_swap_b32 v{v}, v{v+1}")
        e(f"v_permlane32_swap_b32 v{v+2}, v{v+3}")
        e("s_nop 0")
        e(f"v_add_f32 v{v}, v{v}, v{v+1}")
        e(f"v_add_f32 v{v+2}, v{v+2}, v{v+3}")
        e("s_nop 1")
        e(f"v_permlane16_swap_b32 v{v}, v{v+2}")
        e("s_nop 1")
        e(f"v_add_f32 v{v}, v{v}, v{v+2}")
        e("s_nop 1")
        e(f"v_add_f32_dpp v{v}, v{v}, v{v} row_ror:8 row_mask:0xf bank_mask:0xf")

    def poll(self, name, loads, v, n, t, sleep, bound):
        e = self.e
        e(f"s_mov_b32 s{sSP}, {bound}")
        self.lab(f"L_{name}_poll")
        loads()
        e("s_waitcnt vmcnt(0)")
        e(f"v_max_u32 v{t}, v{v}, v{v+1}")
        for k in range(1, n // 2):
            e(f"v_max3_u32 v{t}, v{t}, v{v+2*k}, v{v+2*k+1}")
        e(f"v_cmp_eq_u32 vcc, -1, v{t}")
        e(f"s_sub_u32 s{sSP}, s{sSP}, 1")
        e(f"s_cbranch_vccz L_{name}_go")
        if sleep:
            e(f"s_sleep {sleep}")
        e(f"s_cmp_lg_u32 s{sSP}, 0")
        e(f"s_cbranch_scc1 L_{name}_poll")
        self.lab(f"L_{name}_go")

    def streamer(self):
        o = self.o
        e = self.e
        vOFF, vQ, vM, vA, vACC, vPA, vPB, vT, vR0, vMX, vR2, vST, vS, vP = \
            1, 4, 8, 12, 20, 24, 25, 26, 27, 28, 29, 30, 32, 40
        vP2, vTMP, vLA, vRING = 72, 88, 3, 128
        R = 32
        pol = o["pol_kv"]

        def ring(n):
            return f"v[{vRING+4*n}:{vRING+4*n+3}]"

        def load(n, srd):
            e(f"buffer_load_dwordx4 {ring(n)}, v{vOFF}, s[{srd}:{srd+3}], s{sOFF} offen offset:{(n%4)*1024} {pol}")
            if n % 4 == 3:
                e(f"s_add_u32 s{sOFF}, s{sOFF}, 16384")

        self.lab("L_stream")
        e("s_setprio 3")
        if o["stamps"]:
            e(f"v_mov_b32 v{vST}, 0")
        self.stamp(0, vST)
        e(f"s_lshl_b32 s{sT0}, s2, 20")
        self.srd(RA, sK, f"s{sT0}", 1 << 20)
        e(f"s_lshl_b32 s{sT1}, s{sHW}, 12")
        e(f"v_lshlrev_b32 v{vOFF}, 4, v0")
        e(f"v_add_u32 v{vOFF}, s{sT1}, v{vOFF}")
        self.c("the last eighth of this wave's keys goes to LDS, the first eighth to the register ring")
        e(f"s_lshl_b32 s{sT1}, s{sHW}, 15")
        e(f"s_add_u32 m0, s{sT1}, {KB}")
        e(f"s_mov_b32 s{sOFF}, {7*131072}")
        d0 = self.depth("d_fill", 0)
        for nn in range(2 * R):
            n = nn % R
            if nn >= d0:
                e(f"s_waitcnt vmcnt({self.depth('d_fill', nn)-1})")
            if nn in (16, 32, 48):
                self.stamp(7 + nn // 16, vST)
            if nn < R:
                e(f"buffer_load_dwordx4 v{vOFF}, s[{RA}:{RA+3}], s{sOFF} offen offset:{(n%4)*1024} {pol} lds")
                if n % 4 == 3:
                    e("s_add_u32 m0, m0, 4096")
                    e(f"s_add_u32 s{sOFF}, s{sOFF}, 16384" if n < R - 1 else f"s_mov_b32 s{sOFF}, 0")
            else:
                load(n, RA)
            if nn == d0 - 1:
                self.srd(RB, sV, f"s{sT0}", 1 << 20)
                self.masks(vM, vT, vR0)
                e(f"s_mov_b32 s{sODD}, 0xaaaaaaaa")
                e(f"s_mov_b32 s{sODD+1}, 0xaaaaaaaa")
                e(f"s_mov_b32 s{sBIT1}, 0xcccccccc")
                e(f"s_mov_b32 s{sBIT1+1}, 0xcccccccc")
                e(f"s_mov_b32 s{sDLO}, 0x01000100")
                e(f"s_mov_b32 s{sDHI}, 0x03020302")
                e("v_and_b32 v2, 15, v0")
                e("v_lshlrev_b32 v2, 5, v2")
                for k in range(8):
                    e(f"v_mov_b32 v{vS+k}, 0")
        self.stamp(1, vST)
        e("s_barrier")
        self.stamp(2, vST)
        self.c("q = bf16(sum of the four helper partials), elements 8c..8c+7")
        for w in range(4):
            e(f"ds_read_b128 v[{vP+8*w}:{vP+8*w+3}], v2 offset:{QP+512*w}")
            e(f"ds_read_b128 v[{vP+8*w+4}:{vP+8*w+7}], v2 offset:{QP+512*w+16}")
        e("s_waitcnt lgkmcnt(0)")
        for k in range(8):
            e(f"v_add_f32 v{vP+k}, v{vP+k}, v{vP+8+k}")
            e(f"v_add_f32 v{vP+16+k}, v{vP+16+k}, v{vP+24+k}")
        for k in range(8):
            e(f"v_add_f32 v{vP+k}, v{vP+k}, v{vP+16+k}")
        for k in range(4):
            e(f"v_cvt_pk_bf16_f32 v{vQ+k}, v{vP+2*k}, v{vP+2*k+1}")

        def reduce16(dst, base):
            p = lambda j: f"v{base+j}"
            full = "row_mask:0xf bank_mask:0xf"
            for m in range(8):
                a, b = p(2 * m), p(2 * m + 1)
                e(f"v_add_f32_dpp {a}, {a}, {a} row_ror:8 row_mask:0xf bank_mask:0x3")
                e(f"v_add_f32_dpp {a}, {b}, {b} row_ror:8 row_mask:0xf bank_mask:0xc")
            for m in range(4):
                a, b = p(4 * m), p(4 * m + 2)
                e(f"v_add_f32_dpp {a}, {a}, {a} row_shl:4 row_mask:0xf bank_mask:0x5")
                e(f"v_add_f32_dpp {a}, {b}, {b} row_shr:4 row_mask:0xf bank_mask:0xa")
            for j in (0, 4, 8, 12):
                e(f"v_add_f32_dpp {p(j)}, {p(j)}, {p(j)} quad_perm:[1,0,3,2] {full}")
            e(f"v_cndmask_b32 {p(0)}, {p(0)}, {p(4)}, s[{sODD}:{sODD+1}]")
            e(f"v_cndmask_b32 {p(8)}, {p(8)}, {p(12)}, s[{sODD}:{sODD+1}]")
            e("s_nop 0")
            e(f"v_add_f32_dpp {p(0)}, {p(0)}, {p(0)} quad_perm:[2,3,0,1] {full}")
            e(f"v_add_f32_dpp {p(8)}, {p(8)}, {p(8)} quad_perm:[2,3,0,1] {full}")
            e(f"v_cndmask_b32 v{dst}, {p(0)}, {p(8)}, s[{sBIT1}:{sBIT1+1}]")

        def dots(dst, b):
            e(f"v_dot2_f32_bf16 v{dst}, v{b}, v{vQ}, 0")
            for k in range(1, 4):
                e(f"v_dot2_f32_bf16 v{dst}, v{b+k}, v{vQ+k}, v{dst}")

        def scores(r0, r1):
            self.c("scores: bf16(dot), times Dh^-0.5, bf16 again")
            e(f"v_cvt_pk_bf16_f32 v{vT}, v{r0}, v{r1}")
            e(f"v_lshlrev_b32 v{r0}, 16, v{vT}")
            e(f"v_and_b32 v{vT}, 0xffff0000, v{vT}")
            e(f"v_mul_f32 v{r0}, {f32(128 ** -0.5)}, v{r0}")
            e(f"v_mul_f32 v{vT}, {f32(128 ** -0.5)}, v{vT}")
            for k in range(7):
                e(f"v_mov_b32 v{vS+k}, v{vS+k+1}")
            e(f"v_cvt_pk_bf16_f32 v{vS+7}, v{r0}, v{vT}")

        def ldsread(n):
            t = vTMP + 4 * (n % 4)
            e(f"ds_read_b128 v[{t}:{t+3}], v{vLA} offset:{1024*n}")

        def kbody(key, srd, with_lds=False):
            if with_lds:
                e(f"s_lshl_b32 s{sT1}, s{sHW}, 15")
                e(f"s_add_u32 s{sT1}, s{sT1}, {KB}")
                e(f"v_lshlrev_b32 v{vLA}, 4, v0")
                e(f"v_add_u32 v{vLA}, s{sT1}, v{vLA}")
                for n in range(3):
                    ldsread(n)
            for n in range(R):
                j = n % 16
                e(f"s_waitcnt vmcnt({self.depth(key, n)-1})")
                dots(vP + j, vRING + 4 * n)
                load(n, srd)
                if with_lds:
                    if n + 3 < R:
                        ldsread(n + 3)
                    e(f"s_waitcnt lgkmcnt({min(3, R-1-n)})")
                    dots(vP2 + j, vTMP + 4 * (n % 4))
                if n == 15:
                    reduce16(vR0, vP)
                    if with_lds:
                        reduce16(vR2, vP2)
            reduce16(vP, vP)
            scores(vR0, vP)
            if with_lds:
                reduce16(vP2, vP2)
                scores(vR2, vP2)

        e(f"s_mov_b32 s{sCNT}, 6")
        self.stamp(11, vST)
        self.lab("L_k")
        kbody("d_k", RA)
        self.stamp_iter(11, vST)
        e(f"s_sub_u32 s{sCNT}, s{sCNT}, 1")
        e(f"s_cmp_lg_u32 s{sCNT}, 0")
        e("s_cbranch_scc1 L_k")
        self.stamp(3, vST)
        e(f"s_mov_b32 s{sOFF}, 0")
        kbody("d_klast", RB, with_lds=True)
        self.stamp(4, vST)
        self.c("softmax numerators against this wave's maximum")
        for k in range(8):
            e(f"v_lshlrev_b32 v{vP+2*k}, 16, v{vS+k}")
            e(f"v_and_b32 v{vP+2*k+1}, 0xffff0000, v{vS+k}")
        e(f"v_max_f32 v{vMX}, v{vP}, v{vP+1}")
        for k in range(1, 8):
            e(f"v_max3_f32 v{vMX}, v{vMX}, v{vP+2*k}, v{vP+2*k+1}")
        self.allreduce("v_max_f32", vMX, vT)
        for k in range(16):
            e(f"v_sub_f32 v{vP+k}, v{vP+k}, v{vMX}")
        for k in range(16):
            e(f"v_mul_f32 v{vP+k}, {f32(LOG2E)}, v{vP+k}")
        for k in range(16):
            e(f"v_exp_f32 v{vP+k}, v{vP+k}")
        e("s_nop 0")
        for k in range(8):
            e(f"v_cvt_pk_bf16_f32 v{vS+k}, v{vP+2*k}, v{vP+2*k+1}")
        for k in range(8):
            e(f"v_add_f32 v{vP+k}, v{vP+k}, v{vP+8+k}")
        for k in range(4):
            e(f"v_add_f32 v{vP+k}, v{vP+k}, v{vP+4+k}")
        e(f"v_add_f32 v{vP}, v{vP}, v{vP+2}")
        e(f"v_add_f32 v{vP+1}, v{vP+1}, v{vP+3}")
        e(f"v_add_f32 v{vP}, v{vP}, v{vP+1}")
        self.allreduce("v_add_f32", vP, vT)
        e(f"s_lshl_b32 s{sT1}, s{sHW}, 2")
        e(f"v_mov_b32 v{vT}, s{sT1}")
        e(f"ds_write_b32 v{vT}, v{vMX} offset:{ST}")
        e(f"ds_write_b32 v{vT}, v{vP} offset:{ST+16}")
        e(f"v_mov_b32 v{vR2}, {FL}")
        for r in range(4):
            e(f"v_mov_b32 v{vACC+r}, 0")
        self.c("address in this wave's row of the o table, in the order the wo rows were loaded")
        if o["rot"]:
            e(f"s_lshr_b32 s{sT1}, s{sB}, 1")
            e(f"s_lshl_b32 s{sT1}, s{sT1}, 2")
            e(f"v_subrev_u32 v2, s{sT1}, v0")
            e("v_and_b32 v2, 15, v2")
            e("v_lshrrev_b32 v3, 4, v0")
            e(f"v_xor_b32 v3, s{sB}, v3")
            e("v_and_b32 v3, 1, v3")
        else:
            e("v_and_b32 v2, 15, v0")
            e("v_bfe_u32 v3, v0, 4, 1")
        e("v_lshlrev_b32 v2, 4, v2")
        e("v_lshl_add_u32 v2, v3, 3, v2")
        e(f"s_mul_i32 s{sT1}, s{sHW}, {OTS}")
        e(f"v_add_u32 v2, s{sT1}, v2")
        self.stamp(5, vST)

        def cof(j):
            return 8 * (j & 1) + 4 * ((j >> 1) & 1) + ((j >> 2) & 1) + 2 * ((j >> 3) & 1)

        def abuild(n):
            pp = vPA if n < 16 else vPB
            a = vA + 4 * (n & 1)
            for r in range(4):
                e(f"v_and_b32_dpp v{a+r}, v{pp}, v{vM+r} row_newbcast:{cof(n%16)} row_mask:0xf bank_mask:0xf")

        def vbody(drain):
            e(f"v_perm_b32 v{vPA}, v{vS}, v{vS}, s{sDLO}")
            e(f"v_perm_b32 v{vPB}, v{vS}, v{vS}, s{sDHI}")
            if not drain:
                for k in range(7):
                    e(f"v_mov_b32 v{vS+k}, v{vS+k+1}")
            else:
                e("s_nop 0")
            abuild(0)
            e("s_nop 0")
            for n in range(R):
                a = vA + 4 * (n & 1)
                e(f"s_waitcnt vmcnt({(R-1-n) if drain else self.depth('d_v', n)-1})")
                e(f"v_mfma_f32_16x16x32_bf16 v[{vACC}:{vACC+3}], v[{a}:{a+3}], {ring(n)}, v[{vACC}:{vACC+3}]")
                if n + 1 < R:
                    abuild(n + 1)
                if drain:
                    e("s_nop 0")
                else:
                    load(n, RB)

        e(f"s_mov_b32 s{sCNT}, 7")
        self.lab("L_v")
        e(f"v_mov_b32 v{vT}, s{sCNT}")
        e(f"ds_write_b32 v{vR2}, v{vT}")
        vbody(False)
        self.stamp_iter(18, vST)
        e(f"s_sub_u32 s{sCNT}, s{sCNT}, 1")
        e(f"s_cmp_lg_u32 s{sCNT}, 0")
        e("s_cbranch_scc1 L_v")
        self.stamp(6, vST)
        vbody(True)
        e("s_nop 7")
        e(f"v_cvt_pk_bf16_f32 v{vACC}, v{vACC}, v{vACC+1}")
        e(f"v_cvt_pk_bf16_f32 v{vACC+1}, v{vACC+2}, v{vACC+3}")
        e(f"ds_write_b64 v2, v[{vACC}:{vACC+1}] offset:{OT}")
        e("s_waitcnt lgkmcnt(0)")
        self.stamp(7, vST)
        e("s_barrier")
        self.stamp_flush(vST, vT)
        e("s_endpgm")

    def helper(self):
        o = self.o
        e = self.e
        vST = 31
        vS, vC = 1, 2
        vXO, vWO = 3, 4
        vM, vA, vACC = 8, 12, 20
        vT, vU, vMEAN, vVAR = 24, 25, 26, 27
        vX = 32
        vD = 44
        vW = 64
        dq = o["d_wq"]
        self.lab("L_helper")
        if o["stamps"]:
            e(f"v_mov_b32 v{vST}, 0")
        self.stamp(0, vST)
        self.srd(RD, sWS, None, NCLR * CLR_KB * 1024)
        self.c("32 waves mark all hand-off slots empty")
        e(f"s_and_b32 s{sT0}, s2, 0x38")
        e(f"s_xor_b32 s{sT1}, s{sHW}, 1")
        e(f"s_or_b32 s{sU}, s{sT0}, s{sT1}")
        e("s_cbranch_scc1 L_noclear")
        e(f"s_lshr_b32 s{sT0}, s2, 6")
        e(f"s_lshl_b32 s{sT0}, s{sT0}, 3")
        e(f"s_add_u32 s{sT0}, s{sT0}, s{sH}")
        e(f"s_mul_i32 s{sOFF}, s{sT0}, {CLR_KB*1024}")
        for r in range(4):
            e(f"v_mov_b32 v{vACC+r}, -1")
        e(f"v_lshlrev_b32 v{vT}, 4, v0")
        for k in range(0 if o["noclear"] else CLR_KB):
            e(f"buffer_store_dwordx4 v[{vACC}:{vACC+3}], v{vT}, s[{RD}:{RD+3}], s{sOFF} offen offset:{1024*(k%4)} sc1")
            if k % 4 == 3:
                e(f"s_add_u32 s{sOFF}, s{sOFF}, 4096")
        self.lab("L_noclear")
        e(f"s_mul_i32 s{sT0}, s{sB}, 1152")
        self.srd(RA, sX, f"s{sT0}", 1152)
        e(f"s_lshl_b32 s{sT0}, s{sH}, 8")
        self.srd(RB, sWQ, f"s{sT0}", 0)
        e(f"s_sub_u32 s{RB+2}, {576*8192}, s{sT0}")
        e(f"v_lshrrev_b32 v{vS}, 4, v0")
        e(f"v_and_b32 v{vC}, 15, v0")
        self.c("x element of lane (s, c), register t: 64 t + 4 ((c + 4 hw) & 15) + s")
        e(f"s_lshl_b32 s{sT1}, s{sHW}, 2")
        e(f"v_add_u32 v{vXO}, s{sT1}, v{vC}")
        e(f"v_and_b32 v{vXO}, 15, v{vXO}")
        e(f"v_lshl_add_u32 v{vXO}, v{vXO}, 2, v{vS}")
        e(f"v_lshlrev_b32 v{vXO}, 1, v{vXO}")
        self.c("register t covers block (t + b) mod 9")
        for t in range(9):
            if t == 0:
                e(f"s_lshl_b32 s{sROT}, s{sB}, 7" if o["rot"] else f"s_mov_b32 s{sROT}, 0")
            else:
                e(f"s_add_u32 s{sROT+t}, s{sROT+t-1}, 128")
                e(f"s_cmp_eq_u32 s{sROT+t}, {9*128}")
                e(f"s_cselect_b32 s{sROT+t}, 0, s{sROT+t}")
            if not o["nox"]:
                e(f"buffer_load_ushort v{vX+t}, v{vXO}, s[{RA}:{RA+3}], s{sROT+t} offen")
        e(f"v_lshlrev_b32 v{vWO}, 13, v{vS}")
        e(f"v_lshl_add_u32 v{vWO}, v{vC}, 4, v{vWO}")
        e(f"s_lshl_b32 s{sT1}, s{sHW}, 17")
        e(f"v_add_u32 v{vWO}, s{sT1}, v{vWO}")

        def wqload(n):
            t, cc = divmod(n, 4)
            e(f"s_lshl_b32 s{sOFF}, s{sROT+t}, 12" if cc == 0 else f"s_add_u32 s{sOFF}, s{sOFF}, {4*8192}")
            if not o["nowq"]:
                e(f"buffer_load_dwordx4 v[{vW+4*n}:{vW+4*n+3}], v{vWO}, s[{RB}:{RB+3}], s{sOFF} offen {o['pol_wq']}")
        for n in range(dq):
            wqload(n)
        self.masks(vM, vT, vU)
        e(f"s_mov_b32 s{sPLO}, 0x05040100")
        e(f"s_mov_b32 s{sPHI}, 0x07060302")
        e(f"s_mov_b32 s{sMSK}, 0")
        e(f"s_mov_b32 s{sMSK+1}, -1")
        e(f"s_waitcnt vmcnt({dq})")
        self.c("a marking wave counts itself in once its stores have completed")
        e(f"s_cmp_lg_u32 s{sU}, 0")
        e("s_cbranch_scc1 L_nocount")
        e("s_waitcnt vmcnt(0)")
        e(f"s_mov_b32 s{sT0}, 1")
        e(f"s_atomic_add s{sT0}, s[{sDBG}:{sDBG+1}], 0")
        e("s_waitcnt lgkmcnt(0)")
        self.lab("L_nocount")
        self.stamp(1, vST)
        self.c("layer norm of row b")
        for t in range(9):
            e(f"v_lshlrev_b32 v{vX+t}, 16, v{vX+t}")
        e(f"v_add_f32 v{vMEAN}, v{vX}, v{vX+1}")
        for t in range(2, 9):
            e(f"v_add_f32 v{vMEAN}, v{vMEAN}, v{vX+t}")
        self.allreduce("v_add_f32", vMEAN, vT)
        e(f"v_mul_f32 v{vMEAN}, {f32(1/576)}, v{vMEAN}")
        for t in range(9):
            e(f"v_sub_f32 v{vD+t}, v{vX+t}, v{vMEAN}")
        e(f"v_mul_f32 v{vVAR}, v{vD}, v{vD}")
        for t in range(1, 9):
            e(f"v_fmac_f32 v{vVAR}, v{vD+t}, v{vD+t}")
        self.allreduce("v_add_f32", vVAR, vT)
        self.ln_finish(vMEAN, vVAR, vT)
        for t in range(9):
            e(f"v_sub_f32 v{vD+t}, v{vX+t}, v{vMEAN}")
        for t in range(9):
            e(f"v_cvt_pk_bf16_f32 v{vD+t}, v{vD+t}, v{vD+t}")
        for t in range(9):
            e(f"v_and_b32 v{vD+t}, 0xffff0000, v{vD+t}")
        for t in range(9):
            self.divide(vX + t, vD + t, vVAR, vT, vU)
        for t in range(9):
            e(f"v_cvt_pk_bf16_f32 v{vX+t}, v{vX+t}, v{vX+t}")
        for r in range(4):
            e(f"v_mov_b32 v{vACC+r}, 0")
        self.stamp(2, vST)

        def abuild(n):
            t, cc = divmod(n, 4)
            a = vA + 4 * (n & 1)
            for r in range(4):
                e(f"v_and_b32_dpp v{a+r}, v{vX+t}, v{vM+r} row_newbcast:{cc} row_mask:0xf bank_mask:0xf")
        abuild(0)
        for n in range(36):
            a = vA + 4 * (n & 1)
            if n + 1 < 36:
                abuild(n + 1)
            else:
                e(f"v_and_b32 v{vT}, 1, v{vS}")
                e(f"v_lshlrev_b32 v{vT}, 4, v{vT}")
                e(f"v_lshl_add_u32 v{vT}, v{vC}, 5, v{vT}")
                e(f"s_lshl_b32 s{sT1}, s{sHW}, 9")
                e(f"v_add_u32 v{vT}, s{sT1}, v{vT}")
            if n == 32:
                e(f"s_load_dword s{sT2}, s[{sDBG}:{sDBG+1}], 0" if not o["nowq"] else f"s_mov_b32 s{sT2}, 64")
            e(f"s_waitcnt vmcnt({min(dq-1, 35-n)})")
            e(f"v_mfma_f32_16x16x32_bf16 v[{vACC}:{vACC+3}], v[{a}:{a+3}], v[{vW+4*n}:{vW+4*n+3}], v[{vACC}:{vACC+3}]")
            if n + dq < 36:
                wqload(n + dq)
        e("s_nop 7")
        e(f"ds_write_b128 v{vT}, v[{vACC}:{vACC+3}] offset:{QP}")
        e(f"v_mov_b32 v{vU}, 64")
        e(f"ds_write_b32 v{vU}, v{vU} offset:{FL-64}")
        e("s_waitcnt lgkmcnt(0)")
        self.stamp(3, vST)
        e("s_barrier")
        self.stamp(4, vST)
        self.c("no slot is written or read before all of them are marked empty")
        e(f"s_mov_b32 s{sSP}, 0x40000")
        self.lab("L_mark_poll")
        e(f"s_cmp_ge_u32 s{sT2}, {NCLR}")
        e("s_cbranch_scc1 L_mark_go")
        e("s_sleep 64")
        e(f"s_mov_b32 s{sT2}, 0")
        e(f"s_atomic_add s{sT2}, s[{sDBG}:{sDBG+1}], 0 glc")
        e(f"s_sub_u32 s{sSP}, s{sSP}, 1")
        e("s_waitcnt lgkmcnt(0)")
        e(f"s_cmp_lg_u32 s{sSP}, 0")
        e("s_cbranch_scc1 L_mark_poll")
        self.lab("L_mark_go")

        vPO, vPO2 = 5, 6
        self.c("publish offsets: 512-B main region (lanes 0-31), 64-B tail region (lanes 0-15)")
        e(f"s_mul_i32 s{sT0}, s2, 2304")
        e(f"s_lshl_b32 s{sT1}, s{sHW}, 9")
        e(f"s_add_u32 s{sT1}, s{sT1}, s{sT0}")
        e(f"v_lshlrev_b32 v{vPO}, 4, v0")
        e(f"v_add_u32 v{vPO}, s{sT1}, v{vPO}")
        e(f"s_lshl_b32 s{sT1}, s{sHW}, 6")
        e(f"s_add_u32 s{sT1}, s{sT1}, s{sT0}")
        e(f"s_add_u32 s{sT1}, s{sT1}, 2048")
        e(f"v_lshlrev_b32 v{vPO2}, 2, v0")
        e(f"v_add_u32 v{vPO2}, s{sT1}, v{vPO2}")

        if not o["nomlp"]:
            e(f"s_cmp_lg_u32 s{sHW}, 3")
            e("s_cbranch_scc1 L_nog1")
            e(f"s_sub_u32 s{sU}, s{sH}, {o['g1']}")
            e(f"s_cmp_ge_u32 s{sU}, 9")
            e("s_cbranch_scc1 L_nog1")
            self.mlp1(vS, vC)
            self.lab("L_nog1")
        self.stamp(5, vST)

        self.c("wo rows of head h as B fragments: columns 128 hw .. +128 and 512 + 16 hw .. +16")
        vF = 112
        vL, vL2 = 64, 96
        vO1, vO2 = 3, 4
        e(f"s_mul_i32 s{sT0}, s{sH}, {128*1152}")
        self.srd(RB, sWO, f"s{sT0}", 128 * 1152)
        e(f"v_mul_u32_u24 v{vO2}, 9216, v{vS}")
        e(f"s_lshl_b32 s{sT1}, s{sHW}, 8")
        e(f"v_lshl_add_u32 v{vO1}, v{vC}, 4, v{vO2}")
        e(f"v_add_u32 v{vO1}, s{sT1}, v{vO1}")
        e(f"s_lshl_b32 s{sT1}, s{sHW}, 5")
        e(f"s_add_u32 s{sT1}, s{sT1}, 1024")
        e(f"v_lshl_add_u32 v{vO2}, v{vC}, 1, v{vO2}")
        e(f"v_add_u32 v{vO2}, s{sT1}, v{vO2}")
        for kb in range(0 if o["nowo"] else 4):
            for ee in range(8):
                if ee % 4 == 0:
                    if o["rot"]:
                        e(f"s_add_u32 s{sOFF}, s{sB}, {2*kb}")
                        e(f"s_and_b32 s{sOFF}, s{sOFF}, 6")
                        e(f"s_lshl_b32 s{sOFF}, s{sOFF}, 2")
                        e(f"s_and_b32 s{sT1}, s{sB}, 1")
                        e(f"s_xor_b32 s{sT1}, s{sT1}, {ee//4}")
                        e(f"s_add_u32 s{sOFF}, s{sOFF}, s{sT1}")
                        e(f"s_mul_i32 s{sOFF}, s{sOFF}, {4*1152}")
                    else:
                        e(f"s_mov_b32 s{sOFF}, {(32*kb+ee)*1152}")
                if ee >= o["d_wo"]:
                    e(f"s_waitcnt vmcnt({2*o['d_wo']-2})")
                e(f"buffer_load_dwordx4 v[{vL+4*ee}:{vL+4*ee+3}], v{vO1}, s[{RB}:{RB+3}], s{sOFF} offen offset:{(ee%4)*1152} {o['pol_wo']}")
                e(f"buffer_load_ushort v{vL2+ee}, v{vO2}, s[{RB}:{RB+3}], s{sOFF} offen offset:{(ee%4)*1152} {o['pol_wo']}")
            e("s_waitcnt vmcnt(0)")
            self.transpose(vF + 36 * kb, vL, 4)
            for r in range(4):
                e(f"v_perm_b32 v{vF+36*kb+32+r}, v{vL2+2*r+1}, v{vL2+2*r}, s{sPLO}")
        self.stamp(6, vST)

        if not o["nomlp"]:
            e(f"s_cmp_lg_u32 s{sHW}, 3")
            e("s_cbranch_scc1 L_nog2")
            e(f"s_sub_u32 s{sU}, s{sH}, {o['g2']}")
            e(f"s_cmp_ge_u32 s{sU}, 9")
            e("s_cbranch_scc1 L_nog2")
            self.mlp2(vS, vC)
            self.lab("L_nog2")

        vG, vXV, vCOL, vPL = 7, 8, 9, 10
        e(f"s_cmp_lg_u32 s{sHW}, 0")
        e("s_cbranch_scc1 L_nopre")
        e(f"s_cmp_ge_u32 s{sH}, 18")
        e("s_cbranch_scc1 L_nopre")
        self.consumer_pre(vG, vXV, vCOL, vPL)
        self.lab("L_nopre")
        self.stamp(7, vST)

        vAO, vZ = 3, 4
        vAF = 64
        vMM, vLL = 80, 84
        vAC = 32
        vAC9 = 20
        vVAL = 88
        e(f"v_and_b32 v{vAO}, 3, v0")
        e(f"v_mul_u32_u24 v{vAO}, {OTS}, v{vAO}")
        e(f"v_lshl_add_u32 v{vAO}, v{vS}, 4, v{vAO}")
        e(f"v_mov_b32 v{vZ}, 0")
        e("s_mov_b32 vcc_lo, 0xffff0000")
        e("s_mov_b32 vcc_hi, 0xffff0000")
        e("s_barrier")
        self.stamp(8, vST)
        e(f"ds_read_b128 v[{vAF}:{vAF+3}], v{vAO} offset:{OT}")
        e(f"ds_read_b128 v[{vMM}:{vMM+3}], v{vZ} offset:{ST}")
        e(f"ds_read_b128 v[{vLL}:{vLL+3}], v{vZ} offset:{ST+16}")
        for kb in range(1, 4):
            e(f"ds_read_b128 v[{vAF+4*kb}:{vAF+4*kb+3}], v{vAO} offset:{OT+64*kb}")
        acc = lambda u: (vAC + 4 * u) if u < 8 else vAC9
        fill = [f"v_max_f32 v{vT}, v{vMM}, v{vMM+1}",
                f"v_max3_f32 v{vT}, v{vT}, v{vMM+2}, v{vMM+3}"]
        fill += [f"v_sub_f32 v{vMM+r}, v{vMM+r}, v{vT}" for r in range(4)]
        fill += [f"v_mul_f32 v{vMM+r}, {f32(LOG2E)}, v{vMM+r}" for r in range(4)]
        fill += [f"v_exp_f32 v{vMM+r}, v{vMM+r}" for r in range(4)]
        fill += [f"v_mul_f32 v{vT}, v{vMM}, v{vLL}"]
        fill += [f"v_fmac_f32 v{vT}, v{vMM+r}, v{vLL+r}" for r in range(1, 4)]
        fill += [f"v_rcp_f32 v{vT}, v{vT}", "s_nop 0"]
        fill += [f"v_mul_f32 v{vMM+r}, v{vMM+r}, v{vT}" for r in range(4)]
        for kb in range(4):
            e(f"s_waitcnt lgkmcnt({[5,2,1,0][kb]})")
            for u in range(9):
                a = acc(u)
                cin = "0" if kb == 0 else f"v[{a}:{a+3}]"
                f = vF + 36 * kb + 4 * u
                e(f"v_mfma_f32_16x16x32_bf16 v[{a}:{a+3}], v[{vAF+4*kb}:{vAF+4*kb+3}], v[{f}:{f+3}], {cin}")
                if kb >= 1 and fill:
                    e(fill.pop(0))
        assert not fill
        self.c("rows r of each result belong to streamer r; lanes 16-31 keep columns u = 4..7")
        e("s_nop 3")
        for k in range(4):
            for r in range(4):
                e(f"v_cndmask_b32 v{acc(k)+r}, v{acc(k)+r}, v{acc(4+k)+r}, vcc")
        for k in range(4):
            e(f"v_mul_f32 v{vVAL+k}, v{acc(k)}, v{vMM}")
        e(f"v_mul_f32 v{vVAL+4}, v{vAC9}, v{vMM}")
        for r in range(1, 4):
            for k in range(4):
                e(f"v_fmac_f32 v{vVAL+k}, v{acc(k)+r}, v{vMM+r}")
            e(f"v_fmac_f32 v{vVAL+4}, v{vAC9+r}, v{vMM+r}")
        for k in range(5):
            e(f"v_min_u32 v{vVAL+k}, -2, v{vVAL+k}")
        e("s_mov_b32 exec_hi, 0")
        e(f"buffer_store_dwordx4 v[{vVAL}:{vVAL+3}], v{vPO}, s[{RD}:{RD+3}], 0 offen sc1")
        e("s_mov_b32 exec_lo, 0xffff")
        e(f"buffer_store_dword v{vVAL+4}, v{vPO2}, s[{RD}:{RD+3}], 0 offen sc1")
        e("s_mov_b64 exec, -1")
        self.stamp(9, vST)
        e(f"s_cmp_lg_u32 s{sHW}, 0")
        e("s_cbranch_scc1 L_hend")
        e(f"s_cmp_ge_u32 s{sH}, 18")
        e("s_cbranch_scc1 L_hend")
        self.consumer_final(vG, vXV, vCOL, vPL)
        self.lab("L_hend")
        self.stamp(10, vST)
        self.stamp_flush(vST, vT)
        if o["probe"] >= 0:
            e(f"s_cmp_lg_u32 s2, {o['probe_wg']}")
            e("s_cbranch_scc1 L_probe_end")
            e(f"s_cmp_lg_u32 s{sHW}, 0")
            e("s_cbranch_scc1 L_probe_end")
            if o["probe"] == 99:
                e("s_mov_b32 s78, s76")
            e("s_add_u32 s78, s78, 20000")
            self.lab("L_probe")
            e("s_memrealtime s[80:81]")
            e("s_waitcnt lgkmcnt(0)")
            e("s_sub_u32 s80, s80, s78")
            e("s_cmp_lt_i32 s80, 0")
            e("s_cbranch_scc1 L_probe")
            self.lab("L_probe_end")
        e("s_endpgm")

    def row_layout(self, vO, vLA, stride, t, u):
        e = self.e
        e(f"v_lshrrev_b32 v{t}, 3, v0")
        e(f"v_and_b32 v{u}, 7, v0")
        e(f"v_lshlrev_b32 v{u}, 4, v{u}")
        e(f"v_mul_u32_u24 v{vO}, {stride}, v{t}")
        e(f"v_add_u32 v{vO}, v{vO}, v{u}")
        e(f"v_mul_u32_u24 v{vLA}, {XTS}, v{t}")
        e(f"v_add_u32 v{vLA}, v{vLA}, v{u}")

    def gemm(self, name, vS, vC, stride):
        o = self.o
        e = self.e
        vO, vLA, vAC, vAF, vL, vF, vOUT = 3, 4, 32, 56, [64, 80], 96, 48
        e(f"v_mul_u32_u24 v{vO}, {8*stride}, v{vS}")
        e(f"v_lshl_add_u32 v{vO}, v{vC}, 3, v{vO}")
        e(f"v_and_b32 v{vLA}, 7, v0")
        e(f"v_mul_u32_u24 v{vLA}, {XTS}, v{vLA}")
        e(f"v_lshl_add_u32 v{vLA}, v{vS}, 4, v{vLA}")
        for k in range(16):
            e(f"v_mov_b32 v{vAC+k}, 0")
        e("s_waitcnt lgkmcnt(0)")

        def loads(buf):
            for ee in range(8):
                if o["d_mlp"] < 16:
                    e(f"s_waitcnt vmcnt({o['d_mlp']-1})")
                e(f"buffer_load_dwordx2 v[{vL[buf]+2*ee}:{vL[buf]+2*ee+1}], v{vO}, s[{RA}:{RA+3}], s{sOFF} offen {o['pol_mlp']}")
                e(f"s_add_u32 s{sOFF}, s{sOFF}, {stride if ee < 7 else 25*stride}")
        e(f"s_mov_b32 s{sOFF}, 0")
        loads(0)
        e(f"s_mov_b32 s{sCNT}, 9")
        self.lab(f"L_{name}")
        for half in range(2):
            loads(1 - half)
            e(f"ds_read_b128 v[{vAF}:{vAF+3}], v{vLA} offset:{XT+64*half}")
            e("s_waitcnt vmcnt(8)")
            self.transpose(vF, vL[half], 2)
            e("s_waitcnt lgkmcnt(0)")
            e("s_nop 0")
            for u in range(4):
                e(f"v_mfma_f32_16x16x32_bf16 v[{vAC+4*u}:{vAC+4*u+3}], v[{vAF}:{vAF+3}], v[{vF+4*u}:{vF+4*u+3}], v[{vAC+4*u}:{vAC+4*u+3}]")
        e(f"v_add_u32 v{vLA}, 128, v{vLA}")
        e(f"s_sub_u32 s{sCNT}, s{sCNT}, 1")
        e(f"s_cmp_lg_u32 s{sCNT}, 0")
        e(f"s_cbranch_scc1 L_{name}")
        e("s_waitcnt vmcnt(0)")
        e("s_nop 3")
        for rr in range(2):
            for u in range(4):
                e(f"v_cndmask_b32 v{vOUT+4*rr+u}, v{vAC+4*u+rr}, v{vAC+4*u+2+rr}, s[{sMSK}:{sMSK+1}]")

    def out_row(self, v, vS, t):
        e = self.e
        e(f"v_and_b32 v{v}, 1, v{vS}")
        e(f"v_lshlrev_b32 v{v}, 2, v{v}")
        e(f"v_and_b32 v{t}, 2, v{vS}")
        e(f"v_add_u32 v{v}, v{v}, v{t}")

    def mlp1(self, vS, vC):
        e = self.e
        vT, vU, vMEAN, vVAR, vV, vW, vRC = 24, 25, 26, 27, 28, 29, 30
        vO, vLA, vB1, vBB, vX, vOUT = 3, 4, 8, 12, 64, 48
        self.c("first MLP matrix, columns 64 u .. +64; layer norm of all rows first")
        e(f"s_lshl_b32 s{sU}, s{sU}, 3")
        e(f"s_add_u32 s{sU}, s{sU}, s{sB}")
        e(f"s_lshl_b32 s{sU}, s{sU}, 7")
        self.srd(RA, sX, None, 8 * 1152)
        self.row_layout(vO, vLA, 1152, vT, vU)
        for t in range(9):
            e(f"buffer_load_dwordx4 v[{vX+4*t}:{vX+4*t+3}], v{vO}, s[{RA}:{RA+3}], 0 offen offset:{128*t}")
        self.srd(RC, sB1, f"s{sU}", 128)
        e(f"v_lshlrev_b32 v{vU}, 3, v{vC}")
        e(f"buffer_load_dwordx2 v[{vB1}:{vB1+1}], v{vU}, s[{RC}:{RC+3}], 0 offen")
        e(f"v_mov_b32 v{vMEAN}, 0")
        e(f"v_mov_b32 v{vVAR}, 0")
        e("s_waitcnt vmcnt(0)")
        for k in range(36):
            e(f"v_lshlrev_b32 v{vT}, 16, v{vX+k}")
            e(f"v_and_b32 v{vU}, 0xffff0000, v{vX+k}")
            e(f"v_add_f32 v{vMEAN}, v{vMEAN}, v{vT}")
            e(f"v_add_f32 v{vVAR}, v{vVAR}, v{vU}")
        e(f"v_add_f32 v{vMEAN}, v{vMEAN}, v{vVAR}")

        def red8(v):
            for mod in ("quad_perm:[1,0,3,2]", "quad_perm:[2,3,0,1]", "row_half_mirror"):
                e("s_nop 1")
                e(f"v_add_f32_dpp v{v}, v{v}, v{v} {mod} row_mask:0xf bank_mask:0xf")
        red8(vMEAN)
        e(f"v_mul_f32 v{vMEAN}, {f32(1/576)}, v{vMEAN}")
        e(f"v_mov_b32 v{vVAR}, 0")
        for k in range(36):
            e(f"v_lshlrev_b32 v{vT}, 16, v{vX+k}")
            e(f"v_and_b32 v{vU}, 0xffff0000, v{vX+k}")
            e(f"v_sub_f32 v{vT}, v{vT}, v{vMEAN}")
            e(f"v_sub_f32 v{vU}, v{vU}, v{vMEAN}")
            e(f"v_fmac_f32 v{vVAR}, v{vT}, v{vT}")
            e(f"v_fmac_f32 v{vVAR}, v{vU}, v{vU}")
        red8(vVAR)
        self.ln_finish(vMEAN, vVAR, vRC)
        for k in range(36):
            e(f"v_lshlrev_b32 v{vT}, 16, v{vX+k}")
            e(f"v_and_b32 v{vU}, 0xffff0000, v{vX+k}")
            e(f"v_sub_f32 v{vT}, v{vT}, v{vMEAN}")
            e(f"v_sub_f32 v{vU}, v{vU}, v{vMEAN}")
            e(f"v_cvt_pk_bf16_f32 v{vU}, v{vT}, v{vU}")
            e(f"v_lshlrev_b32 v{vT}, 16, v{vU}")
            e(f"v_and_b32 v{vU}, 0xffff0000, v{vU}")
            self.divide(vV, vT, vVAR, vRC, vW)
            self.divide(vT, vU, vVAR, vRC, vW)
            e(f"v_cvt_pk_bf16_f32 v{vX+k}, v{vV}, v{vT}")
        for t in range(9):
            e(f"ds_write_b128 v{vLA}, v[{vX+4*t}:{vX+4*t+3}] offset:{XT+128*t}")
        self.stamp(11, 31)
        self.srd(RA, sW1, f"s{sU}", 0)
        e(f"s_sub_u32 s{RA+2}, {576*9216}, s{sU}")
        self.gemm("g1", vS, vC, 9216)
        self.c("bias, gelu, publish")
        e(f"v_lshlrev_b32 v{vBB}, 16, v{vB1}")
        e(f"v_and_b32 v{vBB+1}, 0xffff0000, v{vB1}")
        e(f"v_lshlrev_b32 v{vBB+2}, 16, v{vB1+1}")
        e(f"v_and_b32 v{vBB+3}, 0xffff0000, v{vB1+1}")
        c1 = -2.0 * 0.7978845608028654 * LOG2E
        e(f"s_mov_b32 s{sT2}, {f32(c1 * 0.044715)}")
        e(f"v_mov_b32 v{vW}, {f32(c1)}")
        for k in range(8):
            a = vOUT + k
            self.rbf(a, a)
            e(f"v_add_f32 v{a}, v{a}, v{vBB+k%4}")
            self.rbf(a, a)
            e(f"v_mul_f32 v{vT}, v{a}, v{a}")
            e(f"v_fma_f32 v{vT}, v{vT}, s{sT2}, v{vW}")
            e(f"v_mul_f32 v{vT}, v{vT}, v{a}")
            self.sigmoid_mul(a, a, vT, vU)
        for k in range(4):
            e(f"v_cvt_pk_bf16_f32 v{vOUT+k}, v{vOUT+2*k}, v{vOUT+2*k+1}")
            e(f"v_min_u32 v{vOUT+k}, -2, v{vOUT+k}")
        self.out_row(vT, vS, vU)
        e(f"v_mul_u32_u24 v{vT}, 9216, v{vT}")
        e(f"v_lshl_add_u32 v{vT}, v{vC}, 3, v{vT}")
        e(f"s_add_u32 s{sT0}, s{sU}, {H_OFF}")
        e(f"s_add_u32 s{sT1}, s{sU}, {H_OFF+9216}")
        e(f"buffer_store_dwordx2 v[{vOUT}:{vOUT+1}], v{vT}, s[{RD}:{RD+3}], s{sT0} offen sc1")
        e(f"buffer_store_dwordx2 v[{vOUT+2}:{vOUT+3}], v{vT}, s[{RD}:{RD+3}], s{sT1} offen sc1")

    def mlp2(self, vS, vC):
        e = self.e
        vT, vU = 24, 25
        vO, vLA, vX, vOUT = 3, 4, 64, 48
        self.c("second MLP matrix, rows 576 b .. +576, columns 64 u .. +64")
        self.row_layout(vO, vLA, 9216, vT, vU)
        e(f"s_mul_i32 s{sT0}, s{sB}, 1152")
        e(f"s_add_u32 s{sT0}, s{sT0}, {H_OFF}")

        def loads():
            for t in range(9):
                e(f"buffer_load_dwordx4 v[{vX+4*t}:{vX+4*t+3}], v{vO}, s[{RD}:{RD+3}], s{sT0} offen offset:{128*t} sc1")
        self.poll("h", loads, vX, 36, vT, 64, 0x10000)
        for t in range(9):
            e(f"ds_write_b128 v{vLA}, v[{vX+4*t}:{vX+4*t+3}] offset:{XT+128*t}")
        self.stamp(12, 31)
        e(f"s_lshl_b32 s{sU}, s{sU}, 7")
        e(f"s_mul_i32 s{sT0}, s{sB}, {576*1152}")
        e(f"s_add_u32 s{sT0}, s{sT0}, s{sU}")
        self.srd(RA, sW2, f"s{sT0}", 0)
        e(f"s_sub_u32 s{RA+2}, {576*1152}, s{sU}")
        self.gemm("g2", vS, vC, 1152)
        for k in range(8):
            e(f"v_min_u32 v{vOUT+k}, -2, v{vOUT+k}")
        self.out_row(vT, vS, vU)
        e(f"v_mul_u32_u24 v{vT}, 2304, v{vT}")
        e(f"v_lshl_add_u32 v{vT}, v{vC}, 4, v{vT}")
        e(f"s_mul_i32 s{sT0}, s{sB}, {8*2304}")
        e(f"s_lshl_b32 s{sU}, s{sU}, 1")
        e(f"s_add_u32 s{sT0}, s{sT0}, s{sU}")
        e(f"s_add_u32 s{sT0}, s{sT0}, {M_OFF}")
        e(f"buffer_store_dwordx4 v[{vOUT}:{vOUT+3}], v{vT}, s[{RD}:{RD+3}], s{sT0} offen sc1")
        e(f"buffer_store_dwordx4 v[{vOUT+4}:{vOUT+7}], v{vT}, s[{RD}:{RD+3}], s{sT0} offen offset:2304 sc1")
        self.stamp(13, 31)

    def consumer_pre(self, vG, vXV, vCOL, vPL):
        e = self.e
        vT, vU, vCH, vGR, vMO = 24, 25, 26, 27, 28
        vB = 64
        self.c("this wave finishes 32 output columns of row b: line h of every partial")
        e(f"v_and_b32 v{vCH}, 7, v0")
        e(f"v_lshrrev_b32 v{vGR}, 3, v0")
        e(f"s_lshr_b32 s{sT0}, s{sH}, 2")
        e(f"s_lshl_b32 s{sT0}, s{sT0}, 7")
        e(f"s_and_b32 s{sT1}, s{sH}, 1")
        e(f"s_cmp_ge_u32 s{sH}, 16")
        e(f"s_cselect_b32 s{sT2}, 2, 3")
        e(f"v_lshlrev_b32 v{vCOL}, s{sT2}, v{vCH}")
        e(f"s_add_u32 s{sT2}, s{sT2}, 3")
        e(f"s_lshl_b32 s{sT1}, s{sT1}, s{sT2}")
        e(f"s_add_u32 s{sT0}, s{sT0}, s{sT1}")
        e(f"s_and_b32 s{sT1}, s{sH}, 2")
        e(f"s_lshl_b32 s{sT1}, s{sT1}, 1")
        e(f"s_add_u32 s{sT0}, s{sT0}, s{sT1}")
        e(f"v_add_u32 v{vCOL}, s{sT0}, v{vCOL}")
        e(f"v_mul_u32_u24 v{vMO}, {8*2304}, v{vGR}")
        e(f"v_lshl_add_u32 v{vMO}, v{vCOL}, 2, v{vMO}")
        e(f"v_mul_u32_u24 v{vPL}, 2304, v{vGR}")
        e(f"v_lshl_add_u32 v{vPL}, v{vCH}, 4, v{vPL}")
        e(f"s_mul_i32 s{sT0}, s{sB}, {32*2304}")
        e(f"s_lshl_b32 s{sT1}, s{sH}, 7")
        e(f"s_add_u32 s{sT0}, s{sT0}, s{sT1}")
        e(f"v_add_u32 v{vPL}, s{sT0}, v{vPL}")
        self.c("column of this lane after the reduction, in bytes of bf16")
        e(f"v_bfe_u32 v{vT}, v0, 5, 1")
        e(f"v_bfe_u32 v{vU}, v0, 4, 1")
        e(f"v_lshl_add_u32 v{vT}, v{vU}, 1, v{vT}")
        e(f"v_add_u32 v{vCOL}, v{vCOL}, v{vT}")
        e(f"v_lshlrev_b32 v{vCOL}, 1, v{vCOL}")
        e(f"s_mul_i32 s{sT0}, s{sB}, 1152")
        self.srd(RA, sX, f"s{sT0}", 1152)
        e(f"buffer_load_ushort v{vXV}, v{vCOL}, s[{RA}:{RA+3}], 0 offen")
        self.srd(RB, sB2, None, 1152)
        e(f"buffer_load_ushort v{vG}, v{vCOL}, s[{RB}:{RB+3}], 0 offen")
        self.srd(RA, sOUT, f"s{sT0}", 1152)
        self.c("the MLP partials are fetched once the streamers are well into their V loop")
        e(f"v_mov_b32 v{vU}, 0")
        self.lab("L_mid_poll")
        e("s_sleep 16")
        e(f"ds_read_b32 v{vT}, v{vU} offset:{FL}")
        e("s_waitcnt lgkmcnt(0)")
        e(f"v_readfirstlane_b32 s{sT0}, v{vT}")
        e(f"s_cmp_gt_u32 s{sT0}, {self.o['fl_iter']}")
        e("s_cbranch_scc1 L_mid_poll")
        e(f"s_mul_i32 s{sT0}, s{sB}, 2304")
        e(f"s_add_u32 s{sT0}, s{sT0}, {M_OFF}")

        def loads():
            e(f"buffer_load_dwordx4 v[{vB}:{vB+3}], v{vMO}, s[{RD}:{RD+3}], s{sT0} offen sc1")
        self.poll("m", loads, vB, 4, vT, 64, 1 if self.o["nomlp"] else 0x10000)
        e(f"v_lshlrev_b32 v{vXV}, 16, v{vXV}")
        e(f"v_lshlrev_b32 v{vG}, 16, v{vG}")
        self.treduce(vB)
        self.rbf(vB, vB)
        e(f"v_add_f32 v{vB}, v{vB}, v{vG}")
        self.rbf(vB, vB)
        e(f"v_mul_f32 v{vT}, {f32(-LOG2E)}, v{vB}")
        self.sigmoid_mul(vG, vB, vT, vU)
        self.rbf(vG, vG)

    def consumer_final(self, vG, vXV, vCOL, vPL):
        e = self.e
        vB, vT = 64, 24
        for t in range(1, 4):
            e(f"s_mov_b32 s{sT0+t-1}, {8*t*2304}")

        def loads():
            for t in range(4):
                so = "0" if t == 0 else f"s{sT0+t-1}"
                e(f"buffer_load_dwordx4 v[{vB+4*t}:{vB+4*t+3}], v{vPL}, s[{RD}:{RD+3}], {so} offen sc1")
        self.poll("fin", loads, vB, 16, vT, 0, 0x40000)
        for k in range(4):
            e(f"v_add_f32 v{vB+k}, v{vB+k}, v{vB+4+k}")
            e(f"v_add_f32 v{vB+8+k}, v{vB+8+k}, v{vB+12+k}")
        for k in range(4):
            e(f"v_add_f32 v{vB+k}, v{vB+k}, v{vB+8+k}")
        self.treduce(vB)
        self.rbf(vB, vB)
        e(f"v_mul_f32 v{vB}, v{vB}, v{vG}")
        self.rbf(vB, vB)
        e(f"v_add_f32 v{vB}, v{vB}, v{vXV}")
        e(f"v_cvt_pk_bf16_f32 v{vB}, v{vB}, v{vB}")
        e("s_mov_b32 exec_lo, 0x00ff00ff")
        e("s_mov_b32 exec_hi, 0x00ff00ff")
        e(f"buffer_store_short v{vB}, v{vCOL}, s[{RA}:{RA+3}], 0 offen")
        e("s_mov_b64 exec, -1")

    def build(self, header):
        e = self.e
        self.L.extend(header)
        self.L.append(f"; @launch grid=(256,1,1) block=(512,1,1) lds={LDS_BYTES}")
        self.L.append('.amdgcn_target "amdgcn-amd-amdhsa--gfx950"')
        self.L.append(".text")
        self.L.append(f".globl {NAME}_kernel")
        self.L.append(".p2align 8")
        self.L.append(f".type {NAME}_kernel,@function")
        self.lab(f"{NAME}_kernel")
        if self.o["probe"] >= 0:
            e("s_memrealtime s[76:77]")
        e("s_cmp_ge_u32 s2, 256")
        e("s_cbranch_scc1 L_exit")
        e("s_load_dwordx16 s[8:23], s[0:1], 0")
        e("s_load_dwordx8 s[24:31], s[0:1], 64")
        e("s_load_dwordx2 s[32:33], s[0:1], 96")
        e("v_lshrrev_b32 v1, 6, v0")
        e("v_and_b32 v0, 63, v0")
        e(f"v_readfirstlane_b32 s{sWAVE}, v1")
        e(f"s_lshr_b32 s{sB}, s2, 5")
        e(f"s_and_b32 s{sH}, s2, 31")
        e(f"s_and_b32 s{sHW}, s{sWAVE}, 3")
        e(f"s_cmp_ge_u32 s{sWAVE}, 4")
        e("s_waitcnt lgkmcnt(0)")
        e("s_cbranch_scc1 L_stream")
        self.helper()
        self.streamer()
        self.lab("L_exit")
        e("s_endpgm")
        self.L.append('.section .rodata,"a"')
        self.L.append(".p2align 6")
        self.L.append(f".amdhsa_kernel {NAME}_kernel")
        for d in ("next_free_vgpr 256", "next_free_sgpr 96", "accum_offset 256",
                  "group_segment_fixed_size 0", "kernarg_size 104", "user_sgpr_count 2",
                  "user_sgpr_kernarg_segment_ptr 1", "system_sgpr_workgroup_id_x 1",
                  "float_denorm_mode_32 3"):
            self.L.append("  .amdhsa_" + d)
        self.L.append(".end_amdhsa_kernel")
        return "\n".join(self.L) + "\n"


def header():
    ref = open(f"cdna_kernels/{NAME}.s.ref").read().splitlines()
    return [l for l in ref if l.startswith(";") and "@launch" not in l]


def generate(**kw):
    return G(**kw).build(header())


if __name__ == "__main__":
    kw = {}
    out = f"cdna_kernels/{NAME}.s"
    for a in sys.argv[1:]:
        k, v = a.split("=", 1)
        if k == "out":
            out = v
        else:
            kw[k] = int(v) if v.lstrip("-").isdigit() else v
    open(out, "w").write(generate(**kw))
```

```python
import sys, struct

NAME = "recurrent_scan__mha_block_cached__dense_activation_gelu__decode"


def f32(x):
    return "0x%08x" % struct.unpack("<I", struct.pack("<f", x))[0]


DEFAULTS = dict(
    d_fill="5",
    d_k="5",
    d_klast="5",
    d_v="5",
    d_wq=4,
    d_wq2=3, n_wq2=0,
    skipst=1,
    d_wo=1,
    d_mlp=8,
    pol_kv="nt", pol_wq="", pol_wo="", pol_mlp="nt",
    pol_out="", pol_clr="sc1", pol_hm="sc1",
    dtouch="",
    vat="",
    boost="4-7",
    pre=1,
    d_pre=6,
    late=0,
    wqmap=1,
    hskew=0,
    stag=0,
    flag=0,
    pf=0,
    pol_pf="sc1",
    nclr=64,
    fl_iter=4,
    rot=1,
    g1=14, g2=23,
    nowo=0, nomlp=0, noclear=0, nowq=0, nox=0, noat=0,
    probe=-1, probe_wg=64,
    stamps=0,
)

QP = 0
OT = 2048
OTS = 288
ST = 3328
FL = 3360
XT = 4096
XTS = 1168
KB = 16384
LDS_BYTES = KB + 131072

P_OFF = 0
M_OFF = 256 * 2304
H_OFF = M_OFF + 64 * 2304
STAMP_OFF = 0x200000
WS_BYTES = H_OFF + 8 * 9216

sX, sK, sV, sWQ, sWO, sW1, sB1 = 8, 10, 12, 14, 16, 20, 22
sW2, sB2, sOUT, sDBG, sWS = 24, 26, 28, 30, 32
sWAVE, sB, sH, sHW = 3, 34, 35, 4
RA, RB, RC, RD = 36, 40, 44, 48
sU, sCLR = 54, 55
sROT = 84
sOFF, sCNT, sT0, sT1, sT2 = 56, 57, 58, 59, 60
sODD, sBIT1 = 62, 64
sPLO, sPHI, sDLO, sDHI = 66, 67, 68, 69
sMSK = 70
sTS = 72
sSP = 74
LOG2E = 1.4426950408889634


class G:
    def __init__(self, **kw):
        self.o = dict(DEFAULTS)
        for k in kw:
            assert k in self.o, k
        self.o.update(kw)
        self.L = []

    def e(self, s):
        self.L.append("    " + s)

    def lab(self, s):
        self.L.append(s + ":")

    def c(self, s):
        self.L.append("    ; " + s)

    def depth(self, key, n):
        p = str(self.o[key]).split(",")
        return int(p[n % len(p)])

    def srd(self, r, ptr, off=None, nrec=0):
        if off is None:
            self.e(f"s_mov_b32 s{r}, s{ptr}")
            self.e(f"s_and_b32 s{r+1}, s{ptr+1}, 0xffff")
        else:
            self.e(f"s_add_u32 s{r}, s{ptr}, {off}")
            self.e(f"s_addc_u32 s{r+1}, s{ptr+1}, 0")
            self.e(f"s_and_b32 s{r+1}, s{r+1}, 0xffff")
        self.e(f"s_mov_b32 s{r+2}, {nrec}")
        self.e(f"s_mov_b32 s{r+3}, 0x20000")

    def stamp(self, idx, vs):
        if self.o["probe"] == idx and vs == 31:
            self.e("s_memrealtime s[78:79]")
            self.e("s_waitcnt lgkmcnt(0)")
        if not self.o["stamps"]:
            return
        self.e(f"s_memrealtime s[{sTS}:{sTS+1}]")
        self.e("s_waitcnt lgkmcnt(0)")
        self.e(f"v_writelane_b32 v{vs}, s{sTS}, {idx}")

    def stamp_iter(self, base, vs):
        if not self.o["stamps"]:
            return
        self.e(f"s_memrealtime s[{sTS}:{sTS+1}]")
        self.e(f"s_sub_u32 m0, {base + 7}, s{sCNT}")
        self.e("s_waitcnt lgkmcnt(0)")
        self.e(f"v_writelane_b32 v{vs}, s{sTS}, m0")

    def stamp_flush(self, vs, vt):
        if not self.o["stamps"]:
            return
        self.e("s_mov_b64 exec, -1")
        self.e(f"s_getreg_b32 s{sT0}, hwreg(HW_REG_XCC_ID)")
        self.e(f"v_writelane_b32 v{vs}, s{sT0}, 31")
        self.e(f"s_lshl_b32 s{sT0}, s2, 3")
        self.e(f"s_add_u32 s{sT0}, s{sT0}, s{sWAVE}")
        self.e(f"s_xor_b32 s{sT0}, s{sT0}, 4")
        self.e(f"s_lshl_b32 s{sT0}, s{sT0}, 8")
        self.e(f"s_add_u32 s{sT0}, s{sT0}, {STAMP_OFF}")
        self.e(f"v_lshlrev_b32 v{vt}, 2, v0")
        self.e(f"v_add_u32 v{vt}, s{sT0}, v{vt}")
        self.e(f"global_store_dword v{vt}, v{vs}, s[{sWS}:{sWS+1}]")
        self.e("s_waitcnt vmcnt(0)")

    def allreduce(self, op, v, t):
        for mod in ("quad_perm:[1,0,3,2]", "quad_perm:[2,3,0,1]", "row_half_mirror", "row_mirror"):
            self.e("s_nop 1")
            self.e(f"{op}_dpp v{v}, v{v}, v{v} {mod} row_mask:0xf bank_mask:0xf")
        for sw in ("v_permlane16_swap_b32", "v_permlane32_swap_b32"):
            self.e(f"v_mov_b32 v{t}, v{v}")
            self.e("s_nop 1")
            self.e(f"{sw} v{t}, v{v}")
            self.e("s_nop 1")
            self.e(f"{op} v{v}, v{v}, v{t}")

    def masks(self, vm, t0, t1):
        self.e(f"v_and_b32 v{t0}, 1, v0")
        self.e(f"v_lshlrev_b32 v{t0}, 4, v{t0}")
        self.e(f"v_mov_b32 v{t1}, 0xffff")
        self.e(f"v_lshlrev_b32 v{t0}, v{t0}, v{t1}")
        self.e(f"v_bfe_u32 v{t1}, v0, 1, 2")
        for r in range(4):
            self.e(f"v_cmp_eq_u32 vcc, {r}, v{t1}")
            self.e("s_nop 1")
            self.e(f"v_cndmask_b32 v{vm+r}, 0, v{t0}, vcc")

    def rbf(self, dst, src):
        self.e(f"v_cvt_pk_bf16_f32 v{dst}, v{src}, v{src}")
        self.e(f"v_and_b32 v{dst}, 0xffff0000, v{dst}")

    def ln_finish(self, vMEAN, vVAR, vT):
        e = self.e
        e(f"v_mul_f32 v{vVAR}, {f32(1/576)}, v{vVAR}")
        self.rbf(vMEAN, vMEAN)
        self.rbf(vVAR, vVAR)
        e(f"v_add_f32 v{vVAR}, {f32(1e-5)}, v{vVAR}")
        self.rbf(vVAR, vVAR)
        e(f"v_sqrt_f32 v{vVAR}, v{vVAR}")
        e("s_nop 0")
        self.rbf(vVAR, vVAR)
        e(f"v_rcp_f32 v{vT}, v{vVAR}")
        e("s_nop 0")

    def divide(self, dst, num, den, rcp, tmp):
        e = self.e
        e(f"v_mul_f32 v{dst}, v{num}, v{rcp}")
        e(f"v_fma_f32 v{tmp}, -v{dst}, v{den}, v{num}")
        e(f"v_fmac_f32 v{dst}, v{tmp}, v{rcp}")

    def transpose(self, dst, src, w):
        for m in range(w):
            for r in range(4):
                lo, hi = src + 2 * w * r + m, src + 2 * w * r + w + m
                self.e(f"v_perm_b32 v{dst+8*m+r}, v{hi}, v{lo}, s{sPLO}")
                self.e(f"v_perm_b32 v{dst+8*m+4+r}, v{hi}, v{lo}, s{sPHI}")

    def sigmoid_mul(self, dst, x, arg, t):
        e = self.e
        e(f"v_exp_f32 v{t}, v{arg}")
        e("s_nop 0")
        e(f"v_add_f32 v{t}, 1.0, v{t}")
        e(f"v_rcp_f32 v{t}, v{t}")
        e("s_nop 0")
        e(f"v_mul_f32 v{dst}, v{x}, v{t}")

    def treduce(self, v):
        e = self.e
        e("s_nop 1")
        e(f"v_permlane32_swap_b32 v{v}, v{v+1}")
        e(f"v_permlane32_swap_b32 v{v+2}, v{v+3}")
        e("s_nop 0")
        e(f"v_add_f32 v{v}, v{v}, v{v+1}")
        e(f"v_add_f32 v{v+2}, v{v+2}, v{v+3}")
        e("s_nop 1")
        e(f"v_permlane16_swap_b32 v{v}, v{v+2}")
        e("s_nop 1")
        e(f"v_add_f32 v{v}, v{v}, v{v+2}")
        e("s_nop 1")
        e(f"v_add_f32_dpp v{v}, v{v}, v{v} row_ror:8 row_mask:0xf bank_mask:0xf")

    def touch(self, name, ptr):
        e = self.e
        e(f"s_cmp_eq_u32 s{sHW}, 3")
        e(f"s_cbranch_scc1 L_notouch{name}")
        e(f"s_mul_i32 s{sT0}, s2, 20736")
        e(f"s_mul_i32 s{sT1}, s{sHW}, 6912")
        e(f"s_add_u32 s{sT0}, s{sT0}, s{sT1}")
        self.srd(RC, ptr, f"s{sT0}", 6912)
        e(f"v_lshlrev_b32 v24, 4, v0")
        e(f"s_mov_b32 s{sT1}, 4096")
        for k in range(7):
            if k >= 2:
                e("s_waitcnt vmcnt(1)")
            e(f"buffer_load_dwordx4 v[{104+4*(k&1)}:{107+4*(k&1)}], v24, s[{RC}:{RC+3}], {'0' if k < 4 else 's%d' % sT1} offen offset:{1024*(k%4)} {self.o['pol_pf']}")
        e("s_waitcnt vmcnt(0)")
        self.lab(f"L_notouch{name}")

    def wait_marked(self, name, t, u):
        e = self.e
        if self.o["noat"]:
            return
        self.c("no slot is written or read before all of them are marked empty")
        e(f"s_mov_b32 s{sSP}, 0x40000")
        if self.o["flag"]:
            ncl = self.o["nclr"]
            self.srd(RC, sDBG, None, 256)
            e(f"v_and_b32 v{t}, {ncl-1}, v0")
            e(f"v_lshlrev_b32 v{t}, 2, v{t}")
            e(f"buffer_load_dword v{u}, v{t}, s[{RC}:{RC+3}], 0 offen")
            self.lab(f"L_{name}_poll")
            e("s_waitcnt vmcnt(0)")
            e(f"v_cmp_eq_u32 vcc, 0, v{u}")
            e(f"s_sub_u32 s{sSP}, s{sSP}, 1")
            e(f"s_cbranch_vccz L_{name}_go")
            e("s_sleep 64")
            e(f"v_mov_b32 v{u}, 0")
            e(f"buffer_atomic_add v{u}, v{t}, s[{RC}:{RC+3}], 0 offen sc0 sc1")
            e(f"s_cmp_lg_u32 s{sSP}, 0")
            e(f"s_cbranch_scc1 L_{name}_poll")
            e("s_waitcnt vmcnt(0)")
        else:
            e(f"s_load_dword s{sT2}, s[{sDBG}:{sDBG+1}], 0")
            self.lab(f"L_{name}_poll")
            e("s_waitcnt lgkmcnt(0)")
            e(f"s_cmp_ge_u32 s{sT2}, {self.o['nclr']}")
            e(f"s_cbranch_scc1 L_{name}_go")
            e("s_sleep 64")
            e(f"s_mov_b32 s{sT2}, 0")
            e(f"s_atomic_add s{sT2}, s[{sDBG}:{sDBG+1}], 0 glc")
            e(f"s_sub_u32 s{sSP}, s{sSP}, 1")
            e(f"s_cmp_lg_u32 s{sSP}, 0")
            e(f"s_cbranch_scc1 L_{name}_poll")
            e("s_waitcnt lgkmcnt(0)")
        self.lab(f"L_{name}_go")

    def poll(self, name, loads, v, n, t, sleep, bound):
        e = self.e
        e(f"s_mov_b32 s{sSP}, {bound}")
        self.lab(f"L_{name}_poll")
        loads()
        e("s_waitcnt vmcnt(0)")
        e(f"v_max_u32 v{t}, v{v}, v{v+1}")
        for k in range(1, n // 2):
            e(f"v_max3_u32 v{t}, v{t}, v{v+2*k}, v{v+2*k+1}")
        e(f"v_cmp_eq_u32 vcc, -1, v{t}")
        e(f"s_sub_u32 s{sSP}, s{sSP}, 1")
        e(f"s_cbranch_vccz L_{name}_go")
        if sleep:
            e(f"s_sleep {sleep}")
        e(f"s_cmp_lg_u32 s{sSP}, 0")
        e(f"s_cbranch_scc1 L_{name}_poll")
        self.lab(f"L_{name}_go")

    def weight_pass_setup(self):
        e = self.e
        self.c("lane offsets of the weight pass: v4 linear, v5 w1 rows, v6 w1 row ends, v7 wq rows")
        e("v_lshlrev_b32 v5, 4, v0")
        e(f"s_lshl_b32 s{sT1}, s{sHW}, 10")
        e(f"v_add_u32 v4, s{sT1}, v5")
        e(f"s_mul_i32 s{sT1}, s{sHW}, 9216")
        e(f"v_add_u32 v5, s{sT1}, v5")
        e("v_lshrrev_b32 v6, 3, v0")
        e("v_mul_u32_u24 v6, 9216, v6")
        e("v_and_b32 v7, 7, v0")
        e("v_lshl_add_u32 v6, v7, 4, v6")
        e(f"s_lshl_b32 s{sT1}, s{sT1}, 3")
        e(f"s_add_u32 s{sT1}, s{sT1}, 1024")
        e(f"v_add_u32 v6, s{sT1}, v6")
        e("v_lshrrev_b32 v7, 4, v0")
        e("v_lshlrev_b32 v7, 13, v7")
        e("v_and_b32 v8, 15, v0")
        e("v_lshl_add_u32 v7, v8, 4, v7")
        e(f"s_lshl_b32 s{sT1}, s{sHW}, 15")
        e(f"v_add_u32 v7, s{sT1}, v7")
        e(f"s_and_b32 s{sU}, s2, 7")
        e(f"s_lshr_b32 s{sCLR}, s2, 3")

    def weight_pass(self, dst):
        e = self.e
        d = self.o["d_pre"]
        n = [0]

        def ld(v, srd, so):
            if n[0] >= d:
                e(f"s_waitcnt vmcnt({d-1})")
            if so:
                e(f"s_mov_b32 s{sOFF}, {so}")
            e(f"buffer_load_dwordx4 v[{dst}:{dst+3}], v{v}, s[{srd}:{srd+3}], {'s%d' % sOFF if so else '0'} offen")
            n[0] += 1
        e(f"s_mul_i32 s{sT0}, s{sCLR}, {18*9216}")
        e(f"s_mul_i32 s{sT1}, s{sU}, 1152")
        e(f"s_add_u32 s{sT0}, s{sT0}, s{sT1}")
        self.srd(RA, sW1, f"s{sT0}", 17 * 9216 + 1152)
        for k in range(5):
            ld(5, RA, 4 * k * 9216)
        ld(6, RA, 0)
        e(f"s_lshl_b32 s{sT0}, s{sB}, 16")
        e(f"s_lshl_b32 s{sT1}, s{sH}, 8")
        e(f"s_add_u32 s{sT0}, s{sT0}, s{sT1}")
        e(f"s_add_u32 s{sT0}, s{sT0}, {512*8192}")
        self.srd(RB, sWQ, f"s{sT0}", 7 * 8192 + 256)
        ld(7, RB, 0)
        e(f"s_lshl_b32 s{sT0}, s{sH}, 3")
        e(f"s_add_u32 s{sT0}, s{sT0}, s{sB}")
        e(f"s_mul_i32 s{sT0}, s{sT0}, 18432")
        self.srd(RC, sWO, f"s{sT0}", 18432)
        for k in range(5):
            ld(4, RC, 4096 * k)
        e(f"s_lshl_b32 s{sT0}, s{sU}, 5")
        e(f"s_add_u32 s{sT0}, s{sT0}, s{sCLR}")
        e(f"s_mul_i32 s{sT0}, s{sT0}, 20736")
        self.srd(RD, sW2, f"s{sT0}", 20736)
        for k in range(6):
            ld(4, RD, 4096 * k)
        return n[0]

    def streamer(self):
        o = self.o
        e = self.e
        vOFF, vQ, vM, vA, vACC, vPA, vPB, vT, vR0, vMX, vR2, vST, vS, vP = \
            1, 4, 8, 12, 20, 24, 25, 26, 27, 28, 29, 30, 32, 40
        vP2, vTMP, vLA, vRING = 72, 88, 3, 128
        R = 32
        pol = o["pol_kv"]

        def ring(n):
            return f"v[{vRING+4*n}:{vRING+4*n+3}]"

        bo = range(*map(int, o["boost"].split("-"))) if o["boost"] else ()
        self.nlab = 0

        def gate(key, n):
            d = self.depth(key, n)
            if n in bo:
                self.nlab += 1
                e(f"s_cbranch_vccz L_bo{self.nlab}")
                e(f"s_waitcnt vmcnt({d-1})")
                self.lab(f"L_bo{self.nlab}")
                e(f"s_waitcnt vmcnt({d})")
            else:
                e(f"s_waitcnt vmcnt({d-1})")

        def load(n, srd):
            e(f"buffer_load_dwordx4 {ring(n)}, v{vOFF}, s[{srd}:{srd+3}], s{sOFF} offen offset:{(n%4)*1024} {pol}")
            if n % 4 == 3:
                e(f"s_add_u32 s{sOFF}, s{sOFF}, 16384")

        e("s_setprio 3")
        e(f"s_lshl_b32 s{sT1}, s{sHW}, 12")
        e(f"v_lshlrev_b32 v{vOFF}, 4, v0")
        e(f"v_add_u32 v{vOFF}, s{sT1}, v{vOFF}")
        self.c("the last eighth of this wave's keys goes to LDS, the first eighth to the register ring")
        e(f"s_lshl_b32 s{sT1}, s{sHW}, 15")
        e(f"s_add_u32 m0, s{sT1}, {KB}")
        if o["pre"]:
            self.weight_pass_setup()
        e("s_waitcnt lgkmcnt(0)")
        if o["stamps"]:
            e(f"v_mov_b32 v{vST}, 0")
        self.stamp(0, vST)
        npre = self.weight_pass(vRING) if o["pre"] else 0
        e(f"s_lshl_b32 s{sT0}, s2, 20")
        self.srd(RA, sK, f"s{sT0}", 1 << 20)
        e(f"s_mov_b32 s{sOFF}, {7*131072}")
        self.stamp(25, vST)
        d0 = self.depth("d_fill", 0)
        for nn in range(2 * R):
            n = nn % R
            if nn + npre >= d0:
                e(f"s_waitcnt vmcnt({self.depth('d_fill', nn)-1})")
            if nn in (16, 32, 48):
                self.stamp(7 + nn // 16, vST)
            if nn < R:
                e(f"buffer_load_dwordx4 v{vOFF}, s[{RA}:{RA+3}], s{sOFF} offen offset:{(n%4)*1024} {pol} lds")
                if n % 4 == 3:
                    e("s_add_u32 m0, m0, 4096")
                    e(f"s_add_u32 s{sOFF}, s{sOFF}, 16384" if n < R - 1 else f"s_mov_b32 s{sOFF}, 0")
            else:
                load(n, RA)
            if nn == d0 - 1:
                self.srd(RB, sV, f"s{sT0}", 1 << 20)
                self.masks(vM, vT, vR0)
                e(f"s_mov_b32 s{sODD}, 0xaaaaaaaa")
                e(f"s_mov_b32 s{sODD+1}, 0xaaaaaaaa")
                e(f"s_mov_b32 s{sBIT1}, 0xcccccccc")
                e(f"s_mov_b32 s{sBIT1+1}, 0xcccccccc")
                e(f"s_mov_b32 s{sDLO}, 0x01000100")
                e(f"s_mov_b32 s{sDHI}, 0x03020302")
                e("v_and_b32 v2, 15, v0")
                e("v_lshlrev_b32 v2, 5, v2")
                for k in range(8):
                    e(f"v_mov_b32 v{vS+k}, 0")
                if bo:
                    e(f"s_getreg_b32 s{sT1}, hwreg(HW_REG_XCC_ID)")
                    e(f"s_and_b32 s{sT2}, s{sT1}, 1")
                    e(f"s_mov_b32 s{sT2+1}, 0")
                    e(f"s_mov_b64 vcc, s[{sT2}:{sT2+1}]")
        self.stamp(1, vST)
        e("s_barrier")
        self.stamp(2, vST)
        self.c("q = bf16(sum of the four helper partials), elements 8c..8c+7")
        for w in range(4):
            e(f"ds_read_b128 v[{vP+8*w}:{vP+8*w+3}], v2 offset:{QP+512*w}")
            e(f"ds_read_b128 v[{vP+8*w+4}:{vP+8*w+7}], v2 offset:{QP+512*w+16}")
        e("s_waitcnt lgkmcnt(0)")
        for k in range(8):
            e(f"v_add_f32 v{vP+k}, v{vP+k}, v{vP+8+k}")
            e(f"v_add_f32 v{vP+16+k}, v{vP+16+k}, v{vP+24+k}")
        for k in range(8):
            e(f"v_add_f32 v{vP+k}, v{vP+k}, v{vP+16+k}")
        for k in range(4):
            e(f"v_cvt_pk_bf16_f32 v{vQ+k}, v{vP+2*k}, v{vP+2*k+1}")

        def reduce16(dst, base):
            p = lambda j: f"v{base+j}"
            full = "row_mask:0xf bank_mask:0xf"
            for m in range(8):
                a, b = p(2 * m), p(2 * m + 1)
                e(f"v_add_f32_dpp {a}, {a}, {a} row_ror:8 row_mask:0xf bank_mask:0x3")
                e(f"v_add_f32_dpp {a}, {b}, {b} row_ror:8 row_mask:0xf bank_mask:0xc")
            for m in range(4):
                a, b = p(4 * m), p(4 * m + 2)
                e(f"v_add_f32_dpp {a}, {a}, {a} row_shl:4 row_mask:0xf bank_mask:0x5")
                e(f"v_add_f32_dpp {a}, {b}, {b} row_shr:4 row_mask:0xf bank_mask:0xa")
            for j in (0, 4, 8, 12):
                e(f"v_add_f32_dpp {p(j)}, {p(j)}, {p(j)} quad_perm:[1,0,3,2] {full}")
            e(f"v_cndmask_b32 {p(0)}, {p(0)}, {p(4)}, s[{sODD}:{sODD+1}]")
            e(f"v_cndmask_b32 {p(8)}, {p(8)}, {p(12)}, s[{sODD}:{sODD+1}]")
            e("s_nop 0")
            e(f"v_add_f32_dpp {p(0)}, {p(0)}, {p(0)} quad_perm:[2,3,0,1] {full}")
            e(f"v_add_f32_dpp {p(8)}, {p(8)}, {p(8)} quad_perm:[2,3,0,1] {full}")
            e(f"v_cndmask_b32 v{dst}, {p(0)}, {p(8)}, s[{sBIT1}:{sBIT1+1}]")

        def dots(dst, b):
            e(f"v_dot2_f32_bf16 v{dst}, v{b}, v{vQ}, 0")
            for k in range(1, 4):
                e(f"v_dot2_f32_bf16 v{dst}, v{b+k}, v{vQ+k}, v{dst}")

        def scores(r0, r1):
            self.c("scores: bf16(dot), times Dh^-0.5, bf16 again")
            e(f"v_cvt_pk_bf16_f32 v{vT}, v{r0}, v{r1}")
            e(f"v_lshlrev_b32 v{r0}, 16, v{vT}")
            e(f"v_and_b32 v{vT}, 0xffff0000, v{vT}")
            e(f"v_mul_f32 v{r0}, {f32(128 ** -0.5)}, v{r0}")
            e(f"v_mul_f32 v{vT}, {f32(128 ** -0.5)}, v{vT}")
            for k in range(7):
                e(f"v_mov_b32 v{vS+k}, v{vS+k+1}")
            e(f"v_cvt_pk_bf16_f32 v{vS+7}, v{r0}, v{vT}")

        def ldsread(n):
            t = vTMP + 4 * (n % 4)
            e(f"ds_read_b128 v[{t}:{t+3}], v{vLA} offset:{1024*n}")

        def kbody(key, srd, with_lds=False):
            if with_lds:
                e(f"s_lshl_b32 s{sT1}, s{sHW}, 15")
                e(f"s_add_u32 s{sT1}, s{sT1}, {KB}")
                e(f"v_lshlrev_b32 v{vLA}, 4, v0")
                e(f"v_add_u32 v{vLA}, s{sT1}, v{vLA}")
                for n in range(3):
                    ldsread(n)
            for n in range(R):
                j = n % 16
                gate(key, n)
                dots(vP + j, vRING + 4 * n)
                load(n, srd)
                if with_lds:
                    if n + 3 < R:
                        ldsread(n + 3)
                    e(f"s_waitcnt lgkmcnt({min(3, R-1-n)})")
                    dots(vP2 + j, vTMP + 4 * (n % 4))
                if n == 15:
                    reduce16(vR0, vP)
                    if with_lds:
                        reduce16(vR2, vP2)
            reduce16(vP, vP)
            scores(vR0, vP)
            if with_lds:
                reduce16(vP2, vP2)
                scores(vR2, vP2)

        e(f"s_mov_b32 s{sCNT}, 6")
        self.stamp(11, vST)
        self.lab("L_k")
        kbody("d_k", RA)
        self.stamp_iter(11, vST)
        e(f"s_sub_u32 s{sCNT}, s{sCNT}, 1")
        e(f"s_cmp_lg_u32 s{sCNT}, 0")
        e("s_cbranch_scc1 L_k")
        self.stamp(3, vST)
        e(f"s_mov_b32 s{sOFF}, 0")
        kbody("d_klast", RB, with_lds=True)
        self.stamp(4, vST)
        self.c("softmax numerators against this wave's maximum")
        for k in range(8):
            e(f"v_lshlrev_b32 v{vP+2*k}, 16, v{vS+k}")
            e(f"v_and_b32 v{vP+2*k+1}, 0xffff0000, v{vS+k}")
        e(f"v_max_f32 v{vMX}, v{vP}, v{vP+1}")
        for k in range(1, 8):
            e(f"v_max3_f32 v{vMX}, v{vMX}, v{vP+2*k}, v{vP+2*k+1}")
        self.allreduce("v_max_f32", vMX, vT)
        for k in range(16):
            e(f"v_sub_f32 v{vP+k}, v{vP+k}, v{vMX}")
        for k in range(16):
            e(f"v_mul_f32 v{vP+k}, {f32(LOG2E)}, v{vP+k}")
        for k in range(16):
            e(f"v_exp_f32 v{vP+k}, v{vP+k}")
        e("s_nop 0")
        for k in range(8):
            e(f"v_cvt_pk_bf16_f32 v{vS+k}, v{vP+2*k}, v{vP+2*k+1}")
        for k in range(8):
            e(f"v_add_f32 v{vP+k}, v{vP+k}, v{vP+8+k}")
        for k in range(4):
            e(f"v_add_f32 v{vP+k}, v{vP+k}, v{vP+4+k}")
        e(f"v_add_f32 v{vP}, v{vP}, v{vP+2}")
        e(f"v_add_f32 v{vP+1}, v{vP+1}, v{vP+3}")
        e(f"v_add_f32 v{vP}, v{vP}, v{vP+1}")
        self.allreduce("v_add_f32", vP, vT)
        e(f"s_lshl_b32 s{sT1}, s{sHW}, 2")
        e(f"v_mov_b32 v{vT}, s{sT1}")
        e(f"v_min_u32 v{vP}, -2, v{vP}")
        e(f"ds_write_b32 v{vT}, v{vMX} offset:{ST}")
        e(f"ds_write_b32 v{vT}, v{vP} offset:{ST+16}")
        e(f"v_mov_b32 v{vR2}, {FL}")
        for r in range(4):
            e(f"v_mov_b32 v{vACC+r}, 0")
        self.c("address in this wave's row of the o table, in the order the wo rows were loaded")
        if o["rot"]:
            e(f"s_lshr_b32 s{sT1}, s{sB}, 1")
            e(f"s_lshl_b32 s{sT1}, s{sT1}, 2")
            e(f"v_subrev_u32 v2, s{sT1}, v0")
            e("v_and_b32 v2, 15, v2")
            e("v_lshrrev_b32 v3, 4, v0")
            e(f"v_xor_b32 v3, s{sB}, v3")
            e("v_and_b32 v3, 1, v3")
        else:
            e("v_and_b32 v2, 15, v0")
            e("v_bfe_u32 v3, v0, 4, 1")
        e("v_lshlrev_b32 v2, 4, v2")
        e("v_lshl_add_u32 v2, v3, 3, v2")
        e(f"s_mul_i32 s{sT1}, s{sHW}, {OTS}")
        e(f"v_add_u32 v2, s{sT1}, v2")
        self.stamp(5, vST)

        def cof(j):
            return 8 * (j & 1) + 4 * ((j >> 1) & 1) + ((j >> 2) & 1) + 2 * ((j >> 3) & 1)

        def abuild(n):
            pp = vPA if n < 16 else vPB
            a = vA + 4 * (n & 1)
            for r in range(4):
                e(f"v_and_b32_dpp v{a+r}, v{pp}, v{vM+r} row_newbcast:{cof(n%16)} row_mask:0xf bank_mask:0xf")

        def vbody(drain):
            e(f"v_perm_b32 v{vPA}, v{vS}, v{vS}, s{sDLO}")
            e(f"v_perm_b32 v{vPB}, v{vS}, v{vS}, s{sDHI}")
            if not drain:
                for k in range(7):
                    e(f"v_mov_b32 v{vS+k}, v{vS+k+1}")
            else:
                e("s_nop 0")
            abuild(0)
            e("s_nop 0")
            for n in range(R):
                a = vA + 4 * (n & 1)
                if drain:
                    e(f"s_waitcnt vmcnt({R-1-n})")
                else:
                    gate("d_v", n)
                e(f"v_mfma_f32_16x16x32_bf16 v[{vACC}:{vACC+3}], v[{a}:{a+3}], {ring(n)}, v[{vACC}:{vACC+3}]")
                if n + 1 < R:
                    abuild(n + 1)
                if drain:
                    e("s_nop 0")
                else:
                    load(n, RB)

        e(f"s_mov_b32 s{sCNT}, 7")
        self.lab("L_v")
        e(f"v_mov_b32 v{vT}, s{sCNT}")
        e(f"ds_write_b32 v{vR2}, v{vT}")
        vbody(False)
        self.stamp_iter(18, vST)
        e(f"s_sub_u32 s{sCNT}, s{sCNT}, 1")
        e(f"s_cmp_lg_u32 s{sCNT}, 0")
        e("s_cbranch_scc1 L_v")
        self.stamp(6, vST)
        vbody(True)
        e("s_nop 7")
        e(f"v_cvt_pk_bf16_f32 v{vACC}, v{vACC}, v{vACC+1}")
        e(f"v_cvt_pk_bf16_f32 v{vACC+1}, v{vACC+2}, v{vACC+3}")
        e(f"ds_write_b64 v2, v[{vACC}:{vACC+1}] offset:{OT}")
        e("s_waitcnt lgkmcnt(0)")
        self.stamp(7, vST)
        e("s_barrier")
        self.stamp_flush(vST, vT)
        e("s_endpgm")

    def helper(self):
        o = self.o
        e = self.e
        vST = 31
        vS, vC = 1, 2
        vXO, vWO = 3, 4
        vM, vA, vACC = 8, 12, 20
        vT, vU, vMEAN, vVAR = 24, 25, 26, 27
        vX = 32
        vD = 44
        vW = 64
        dq = o["d_wq"]
        vE, vEO = 56, 60
        self.lab("L_helper")
        ncl = o["nclr"]
        for r in range(4):
            e(f"v_mov_b32 v{vE+r}, -1")
        e(f"v_lshlrev_b32 v{vEO}, 4, v0")
        e(f"s_lshr_b32 s{sT0}, s2, {(2048 // ncl).bit_length() - 1}")
        e(f"s_lshl_b32 s{sT0}, s{sT0}, 3")
        e(f"s_and_b32 s{sT1}, s2, 7")
        e(f"s_add_u32 s{sT0}, s{sT0}, s{sT1}")
        e(f"s_lshl_b32 s{sT0}, s{sT0}, 2")
        e(f"s_add_u32 s{sT0}, s{sT0}, s{sHW}")
        e(f"s_lshl_b32 s{sCLR}, s{sT0}, 10")
        e("s_waitcnt lgkmcnt(0)")
        if o["stamps"]:
            e(f"v_mov_b32 v{vST}, 0")
        self.stamp(0, vST)
        self.srd(RD, sWS, None, WS_BYTES)
        if o["dtouch"]:
            e(f"s_or_b32 s{sT0}, s2, s{sHW}")
            e("s_cbranch_scc1 L_nodt")
            self.srd(RC, sDBG, None, 256)
            e(f"buffer_load_dword v{vT}, off, s[{RC}:{RC+3}], 0 {o['dtouch']}")
            self.lab("L_nodt")
        e(f"s_and_b32 s{sU}, s2, {(2048 // ncl - 1) & ~7}")
        e(f"s_cselect_b32 s{sCLR}, 0x1000000, s{sCLR}")
        nst = 0 if o["noclear"] else -(-WS_BYTES // (ncl * 4096))

        def marks():
            self.c("a few workgroups mark all hand-off slots empty; elsewhere these stores fall out of range")
            for k in range(nst):
                e(f"buffer_store_dwordx4 v[{vE}:{vE+3}], v{vEO}, s[{RD}:{RD+3}], s{sCLR} offen {o['pol_clr']}")
                e(f"s_add_u32 s{sCLR}, s{sCLR}, {ncl*4096}")
        if not o["late"]:
            if o["skipst"]:
                e("s_cbranch_scc1 L_nomarks")
            marks()
            self.lab("L_nomarks")
            nst = 0
        e(f"s_mul_i32 s{sT0}, s{sB}, 1152")
        self.srd(RA, sX, f"s{sT0}", 1152)
        e(f"s_lshl_b32 s{sT0}, s{sH}, 8")
        self.srd(RB, sWQ, f"s{sT0}", 0)
        e(f"s_sub_u32 s{RB+2}, {576*8192}, s{sT0}")
        e(f"v_lshrrev_b32 v{vS}, 4, v0")
        e(f"v_and_b32 v{vC}, 15, v0")
        self.c("x element of lane (s, c), register t: 64 t + 4 ((c + 4 hw) & 15) + s")
        e(f"s_lshl_b32 s{sT1}, s{sHW}, 2")
        e(f"v_add_u32 v{vXO}, s{sT1}, v{vC}")
        e(f"v_and_b32 v{vXO}, 15, v{vXO}")
        ws, wh, wc = [(1, 16, 4), (4, 16, 1), (16, 4, 1)][o["wqmap"]]
        if o["wqmap"] == 0:
            e(f"v_lshl_add_u32 v{vXO}, v{vXO}, 2, v{vS}")
        elif o["wqmap"] == 1:
            e(f"v_and_b32 v{vT}, 3, v{vXO}")
            e(f"v_lshrrev_b32 v{vXO}, 2, v{vXO}")
            e(f"v_lshl_add_u32 v{vXO}, v{vXO}, 2, v{vS}")
            e(f"v_lshl_add_u32 v{vXO}, v{vXO}, 2, v{vT}")
        else:
            e(f"v_lshl_add_u32 v{vXO}, v{vS}, 4, v{vXO}")
        e(f"v_lshlrev_b32 v{vXO}, 1, v{vXO}")
        self.c("register t covers block (t + b) mod 9")
        for t in range(9):
            if t == 0:
                e(f"s_lshl_b32 s{sROT}, s{sB}, 7" if o["rot"] else f"s_mov_b32 s{sROT}, 0")
            else:
                e(f"s_add_u32 s{sROT+t}, s{sROT+t-1}, 128")
                e(f"s_cmp_eq_u32 s{sROT+t}, {9*128}")
                e(f"s_cselect_b32 s{sROT+t}, 0, s{sROT+t}")
            if not o["nox"]:
                e(f"buffer_load_ushort v{vX+t}, v{vXO}, s[{RA}:{RA+3}], s{sROT+t} offen")
        e(f"v_lshlrev_b32 v{vWO}, {12 + ws.bit_length()}, v{vS}")
        e(f"v_lshl_add_u32 v{vWO}, v{vC}, 4, v{vWO}")
        e(f"s_lshl_b32 s{sT1}, s{sHW}, {12 + wh.bit_length()}")
        e(f"v_add_u32 v{vWO}, s{sT1}, v{vWO}")

        def wqload(n):
            t, cc = divmod(n, 4)
            e(f"s_lshl_b32 s{sOFF}, s{sROT+t}, 12" if cc == 0 else f"s_add_u32 s{sOFF}, s{sOFF}, {wc*8192}")
            if not o["nowq"]:
                e(f"buffer_load_dwordx4 v[{vW+4*n}:{vW+4*n+3}], v{vWO}, s[{RB}:{RB+3}], s{sOFF} offen {o['pol_wq']}")
        for n in range(dq):
            wqload(n)
        marks()
        self.masks(vM, vT, vU)
        e(f"s_mov_b32 s{sPLO}, 0x05040100")
        e(f"s_mov_b32 s{sPHI}, 0x07060302")
        e(f"s_mov_b32 s{sMSK}, 0")
        e(f"s_mov_b32 s{sMSK+1}, -1")
        e(f"s_waitcnt vmcnt({dq+nst})")
        self.stamp(1, vST)
        self.c("layer norm of row b")
        for t in range(9):
            e(f"v_lshlrev_b32 v{vX+t}, 16, v{vX+t}")
        e(f"v_add_f32 v{vMEAN}, v{vX}, v{vX+1}")
        for t in range(2, 9):
            e(f"v_add_f32 v{vMEAN}, v{vMEAN}, v{vX+t}")
        self.allreduce("v_add_f32", vMEAN, vT)
        e(f"v_mul_f32 v{vMEAN}, {f32(1/576)}, v{vMEAN}")
        for t in range(9):
            e(f"v_sub_f32 v{vD+t}, v{vX+t}, v{vMEAN}")
        e(f"v_mul_f32 v{vVAR}, v{vD}, v{vD}")
        for t in range(1, 9):
            e(f"v_fmac_f32 v{vVAR}, v{vD+t}, v{vD+t}")
        self.allreduce("v_add_f32", vVAR, vT)
        self.ln_finish(vMEAN, vVAR, vT)
        for t in range(9):
            e(f"v_sub_f32 v{vD+t}, v{vX+t}, v{vMEAN}")
        for t in range(9):
            e(f"v_cvt_pk_bf16_f32 v{vD+t}, v{vD+t}, v{vD+t}")
        for t in range(9):
            e(f"v_and_b32 v{vD+t}, 0xffff0000, v{vD+t}")
        for t in range(9):
            self.divide(vX + t, vD + t, vVAR, vT, vU)
        for t in range(9):
            e(f"v_cvt_pk_bf16_f32 v{vX+t}, v{vX+t}, v{vX+t}")
        for r in range(4):
            e(f"v_mov_b32 v{vACC+r}, 0")
        self.stamp(2, vST)

        def abuild(n):
            t, cc = divmod(n, 4)
            a = vA + 4 * (n & 1)
            for r in range(4):
                e(f"v_and_b32_dpp v{a+r}, v{vX+t}, v{vM+r} row_newbcast:{cc} row_mask:0xf bank_mask:0xf")
        abuild(0)
        issued = dq
        for n in range(36):
            a = vA + 4 * (n & 1)
            if n + 1 < 36:
                abuild(n + 1)
            else:
                e(f"v_and_b32 v{vT}, 1, v{vS}")
                e(f"v_lshlrev_b32 v{vT}, 4, v{vT}")
                e(f"v_lshl_add_u32 v{vT}, v{vC}, 5, v{vT}")
                e(f"s_lshl_b32 s{sT1}, s{sHW}, 9")
                e(f"v_add_u32 v{vT}, s{sT1}, v{vT}")
            e(f"s_waitcnt vmcnt({issued - n - 1 + (nst if n < dq else 0)})")
            e(f"v_mfma_f32_16x16x32_bf16 v[{vACC}:{vACC+3}], v[{a}:{a+3}], v[{vW+4*n}:{vW+4*n+3}], v[{vACC}:{vACC+3}]")
            while issued < min(36, n + 1 + (o["d_wq2"] if n >= o["n_wq2"] else dq)):
                wqload(issued)
                issued += 1
        e("s_nop 7")
        e(f"ds_write_b128 v{vT}, v[{vACC}:{vACC+3}] offset:{QP}")
        e(f"v_mov_b32 v{vU}, 64")
        e(f"ds_write_b32 v{vU}, v{vU} offset:{FL-64}")
        e(f"ds_write_b128 v{vU}, v[{vE}:{vE+3}] offset:{ST+16-64}")
        e("s_waitcnt lgkmcnt(0)")
        self.stamp(3, vST)
        e("s_barrier")
        self.stamp(4, vST)
        self.c("every wave drained its marking stores before the barrier: count this workgroup in")
        if o["stag"]:
            e(f"s_lshl_b32 s{sCLR}, s{sB}, 1")
            e(f"s_and_b32 s{sT0}, s2, 1")
            e(f"s_add_u32 s{sCLR}, s{sCLR}, s{sT0}")
            e(f"s_or_b32 s{sT0}, s{sU}, s{sHW}")
            e(f"s_cselect_b32 s{sCLR}, 99, s{sCLR}")
            e("s_branch L_nocount")
        e(f"s_or_b32 s{sT0}, s{sU}, s{sHW}")
        e("s_cbranch_scc1 L_nocount")
        if o["flag"]:
            self.srd(RC, sDBG, None, 256)
            e(f"s_lshr_b32 s{sT0}, s2, {(2048 // ncl).bit_length() - 1}")
            e(f"s_lshl_b32 s{sT0}, s{sT0}, 3")
            e(f"s_add_u32 s{sT0}, s{sT0}, s{sH}")
            e(f"s_lshl_b32 s{sT0}, s{sT0}, 2")
            e(f"v_lshlrev_b32 v{vT}, 8, v0")
            if not o["noat"]:
                e(f"buffer_store_dword v{vE}, v{vT}, s[{RC}:{RC+3}], s{sT0} offen sc1")
        elif o["vat"]:
            self.srd(RC, sDBG, None, 256)
            e(f"v_mov_b32 v{vU}, 1")
            e(f"v_lshlrev_b32 v{vMEAN}, 8, v0")
            e(f"buffer_atomic_add v{vU}, v{vMEAN}, s[{RC}:{RC+3}], 0 offen {o['vat'].replace('-', '')}")
        else:
            e(f"s_mov_b32 s{sT0}, 1")
            if not o["noat"]:
                e(f"s_atomic_add s{sT0}, s[{sDBG}:{sDBG+1}], 0")
            e("s_waitcnt lgkmcnt(0)")
        self.lab("L_nocount")

        vPO, vPO2 = 5, 6
        self.c("publish offsets: 512-B main region (lanes 0-31), 64-B tail region (lanes 0-15); other lanes out of range")
        e(f"s_mul_i32 s{sT0}, s2, 2304")
        e(f"s_lshl_b32 s{sT1}, s{sHW}, 9")
        e(f"s_add_u32 s{sT1}, s{sT1}, s{sT0}")
        e(f"v_lshlrev_b32 v{vPO}, 4, v0")
        e(f"v_add_u32 v{vPO}, s{sT1}, v{vPO}")
        e(f"s_lshl_b32 s{sT1}, s{sHW}, 6")
        e(f"s_add_u32 s{sT1}, s{sT1}, s{sT0}")
        e(f"s_add_u32 s{sT1}, s{sT1}, 2048")
        e(f"v_lshlrev_b32 v{vPO2}, 2, v0")
        e(f"v_add_u32 v{vPO2}, s{sT1}, v{vPO2}")
        e(f"v_lshrrev_b32 v{vT}, 1, v{vS}")
        e(f"v_lshl_add_u32 v{vPO}, v{vT}, 24, v{vPO}")
        e(f"v_lshl_add_u32 v{vPO2}, v{vS}, 24, v{vPO2}")

        if o["pf"]:
            self.touch("1", sW1)
        if not o["nomlp"]:
            e(f"s_cmp_lg_u32 s{sHW}, 3")
            e("s_cbranch_scc1 L_nog1")
            e(f"s_lshr_b32 s{sU}, s2, 3")
            e(f"s_sub_u32 s{sU}, s{sU}, {o['g1']}")
            e(f"s_cmp_ge_u32 s{sU}, 9")
            e("s_cbranch_scc1 L_nog1")
            self.mlp1(vS, vC)
            self.lab("L_nog1")
        self.stamp(5, vST)

        self.c("wo rows of head h as B fragments: columns 128 hw .. +128 and 512 + 16 hw .. +16")
        vF = 112
        vL, vL2 = 64, 96
        vO1, vO2 = 3, 4
        e(f"s_mul_i32 s{sT0}, s{sH}, {128*1152}")
        self.srd(RB, sWO, f"s{sT0}", 128 * 1152)
        e(f"v_mul_u32_u24 v{vO2}, 9216, v{vS}")
        e(f"s_lshl_b32 s{sT1}, s{sHW}, 8")
        e(f"v_lshl_add_u32 v{vO1}, v{vC}, 4, v{vO2}")
        e(f"v_add_u32 v{vO1}, s{sT1}, v{vO1}")
        e(f"s_lshl_b32 s{sT1}, s{sHW}, 5")
        e(f"s_add_u32 s{sT1}, s{sT1}, 1024")
        e(f"v_lshl_add_u32 v{vO2}, v{vC}, 1, v{vO2}")
        e(f"v_add_u32 v{vO2}, s{sT1}, v{vO2}")
        for kb in range(0 if o["nowo"] else 4):
            for ee in range(8):
                if ee % 4 == 0:
                    if o["rot"]:
                        e(f"s_add_u32 s{sOFF}, s{sB}, {2*kb}")
                        e(f"s_and_b32 s{sOFF}, s{sOFF}, 6")
                        e(f"s_lshl_b32 s{sOFF}, s{sOFF}, 2")
                        e(f"s_and_b32 s{sT1}, s{sB}, 1")
                        e(f"s_xor_b32 s{sT1}, s{sT1}, {ee//4}")
                        e(f"s_add_u32 s{sOFF}, s{sOFF}, s{sT1}")
                        e(f"s_mul_i32 s{sOFF}, s{sOFF}, {4*1152}")
                    else:
                        e(f"s_mov_b32 s{sOFF}, {(32*kb+ee)*1152}")
                if ee >= o["d_wo"]:
                    e(f"s_waitcnt vmcnt({2*o['d_wo']-2})")
                if o["stag"] and kb < 2 and not o["noat"]:
                    e(f"s_cmp_lg_u32 s{sCLR}, {8*kb+ee}")
                    e(f"s_cbranch_scc1 L_nc{8*kb+ee}")
                    if o["vat"]:
                        self.srd(RC, sDBG, None, 256)
                        e(f"v_mov_b32 v{vU}, 1")
                        e(f"v_lshlrev_b32 v{vT}, 8, v0")
                        e(f"buffer_atomic_add v{vU}, v{vT}, s[{RC}:{RC+3}], 0 offen {o['vat'].replace('-', '')}")
                    else:
                        e(f"s_mov_b32 s{sT2}, 1")
                        e(f"s_atomic_add s{sT2}, s[{sDBG}:{sDBG+1}], 0")
                        e("s_waitcnt lgkmcnt(0)")
                    self.lab(f"L_nc{8*kb+ee}")
                e(f"buffer_load_dwordx4 v[{vL+4*ee}:{vL+4*ee+3}], v{vO1}, s[{RB}:{RB+3}], s{sOFF} offen offset:{(ee%4)*1152} {o['pol_wo']}")
                e(f"buffer_load_ushort v{vL2+ee}, v{vO2}, s[{RB}:{RB+3}], s{sOFF} offen offset:{(ee%4)*1152} {o['pol_wo']}")
            e("s_waitcnt vmcnt(0)")
            self.transpose(vF + 36 * kb, vL, 4)
            if o["pf"] == 2 and kb == 1:
                self.touch("2", sW2)
            for r in range(4):
                e(f"v_perm_b32 v{vF+36*kb+32+r}, v{vL2+2*r+1}, v{vL2+2*r}, s{sPLO}")
        if not o["nowo"]:
            self.wait_marked("mark", vT, vU)
        self.stamp(6, vST)

        if not o["nomlp"]:
            e(f"s_cmp_lg_u32 s{sHW}, 3")
            e("s_cbranch_scc1 L_nog2")
            e(f"s_lshr_b32 s{sU}, s2, 3")
            e(f"s_sub_u32 s{sU}, s{sU}, {o['g2']}")
            e(f"s_cmp_ge_u32 s{sU}, 9")
            e("s_cbranch_scc1 L_nog2")
            self.mlp2(vS, vC)
            self.lab("L_nog2")

        vG, vXV, vCOL, vPL = 7, 8, 9, 10
        e(f"s_cmp_lg_u32 s{sHW}, 0")
        e("s_cbranch_scc1 L_nopre")
        e(f"s_cmp_ge_u32 s{sH}, 18")
        e("s_cbranch_scc1 L_nopre")
        self.consumer_pre(vG, vXV, vCOL, vPL)
        self.lab("L_nopre")
        self.stamp(7, vST)

        vAO, vZ = 3, 4
        vAF = 64
        vMM, vLL = 80, 84
        vAC = 32
        vAC9 = 20
        vVAL = 88
        e(f"v_and_b32 v{vAO}, 3, v0")
        e(f"v_mul_u32_u24 v{vAO}, {OTS}, v{vAO}")
        e(f"v_lshl_add_u32 v{vAO}, v{vS}, 4, v{vAO}")
        e(f"v_mov_b32 v{vZ}, 0")
        self.c("softmax scale of each streamer's partial, once all four have posted max and sum")
        self.lab("L_st_poll")
        e(f"ds_read_b128 v[{vLL}:{vLL+3}], v{vZ} offset:{ST+16}")
        e(f"ds_read_b128 v[{vMM}:{vMM+3}], v{vZ} offset:{ST}")
        e("s_waitcnt lgkmcnt(0)")
        e(f"v_max_u32 v{vT}, v{vLL}, v{vLL+1}")
        e(f"v_max3_u32 v{vT}, v{vT}, v{vLL+2}, v{vLL+3}")
        e(f"v_cmp_eq_u32 vcc, -1, v{vT}")
        e("s_cbranch_vccz L_st_go")
        e("s_sleep 16")
        e("s_branch L_st_poll")
        self.lab("L_st_go")
        e(f"v_max_f32 v{vT}, v{vMM}, v{vMM+1}")
        e(f"v_max3_f32 v{vT}, v{vT}, v{vMM+2}, v{vMM+3}")
        for r in range(4):
            e(f"v_sub_f32 v{vMM+r}, v{vMM+r}, v{vT}")
        for r in range(4):
            e(f"v_mul_f32 v{vMM+r}, {f32(LOG2E)}, v{vMM+r}")
        for r in range(4):
            e(f"v_exp_f32 v{vMM+r}, v{vMM+r}")
        e("s_nop 0")
        e(f"v_mul_f32 v{vT}, v{vMM}, v{vLL}")
        for r in range(1, 4):
            e(f"v_fmac_f32 v{vT}, v{vMM+r}, v{vLL+r}")
        e(f"v_rcp_f32 v{vT}, v{vT}")
        e("s_nop 0")
        for r in range(4):
            e(f"v_mul_f32 v{vMM+r}, v{vMM+r}, v{vT}")
        e("s_mov_b32 vcc_lo, 0xffff0000")
        e("s_mov_b32 vcc_hi, 0xffff0000")
        e("s_setprio 3")
        e("s_barrier")
        self.stamp(8, vST)
        for kb in range(4):
            e(f"ds_read_b128 v[{vAF+4*kb}:{vAF+4*kb+3}], v{vAO} offset:{OT+64*kb}")
        acc = lambda u: (vAC + 4 * u) if u < 8 else vAC9
        self.c("rows r of each result belong to streamer r; lanes 16-31 keep columns u = 4..7")

        def finish(u):
            a = acc(u)
            v = vVAL + u if u < 4 else a
            ops = [f"v_mul_f32 v{v}, v{a}, v{vMM}"]
            ops += [f"v_fmac_f32 v{v}, v{a+r}, v{vMM+r}" for r in range(1, 4)]
            if u == 8:
                ops += [f"v_min_u32 v{v}, -2, v{v}",
                        f"buffer_store_dword v{v}, v{vPO2}, s[{RD}:{RD+3}], 0 offen sc1"]
            elif u >= 4:
                ops += [f"v_cndmask_b32 v{vVAL+u-4}, v{vVAL+u-4}, v{v}, vcc",
                        f"v_min_u32 v{vVAL+u-4}, -2, v{vVAL+u-4}"]
            return ops
        queue = []
        slot = 0
        for i, u in enumerate([8, 0, 4, 1, 5, 2, 6, 3, 7]):
            for kb in range(4):
                if i == 0:
                    e(f"s_waitcnt lgkmcnt({3-kb})")
                a = acc(u)
                cin = "0" if kb == 0 else f"v[{a}:{a+3}]"
                f = vF + 36 * kb + 4 * u
                e(f"v_mfma_f32_16x16x32_bf16 v[{a}:{a+3}], v[{vAF+4*kb}:{vAF+4*kb+3}], v[{f}:{f+3}], {cin}")
                slot += 1
                last = slot
                for _ in range(2):
                    if queue and queue[0][0] <= slot:
                        e(queue.pop(0)[1])
                        slot += 1
            queue += [(last + 8, t) for t in finish(u)]
        while queue:
            if queue[0][0] > slot:
                e(f"s_nop {queue[0][0]-slot-1}")
                slot = queue[0][0]
            e(queue.pop(0)[1])
            slot += 1
        e(f"buffer_store_dwordx4 v[{vVAL}:{vVAL+3}], v{vPO}, s[{RD}:{RD+3}], 0 offen sc1")
        self.stamp(9, vST)
        e(f"s_cmp_lg_u32 s{sHW}, 0")
        e("s_cbranch_scc1 L_hend")
        e(f"s_cmp_ge_u32 s{sH}, 18")
        e("s_cbranch_scc1 L_hend")
        self.consumer_final(vG, vXV, vCOL, vPL)
        self.lab("L_hend")
        self.stamp(10, vST)
        self.stamp_flush(vST, vT)
        if o["probe"] >= 0:
            e(f"s_cmp_lg_u32 s2, {o['probe_wg']}")
            e("s_cbranch_scc1 L_probe_end")
            e(f"s_cmp_lg_u32 s{sHW}, 0")
            e("s_cbranch_scc1 L_probe_end")
            if o["probe"] == 99:
                e("s_mov_b32 s78, s76")
            e("s_add_u32 s78, s78, 20000")
            self.lab("L_probe")
            e("s_memrealtime s[80:81]")
            e("s_waitcnt lgkmcnt(0)")
            e("s_sub_u32 s80, s80, s78")
            e("s_cmp_lt_i32 s80, 0")
            e("s_cbranch_scc1 L_probe")
            self.lab("L_probe_end")
        e("s_endpgm")

    def row_layout(self, vO, vLA, stride, t, u):
        e = self.e
        e(f"v_lshrrev_b32 v{t}, 3, v0")
        e(f"v_and_b32 v{u}, 7, v0")
        e(f"v_lshlrev_b32 v{u}, 4, v{u}")
        e(f"v_mul_u32_u24 v{vO}, {stride}, v{t}")
        e(f"v_add_u32 v{vO}, v{vO}, v{u}")
        e(f"v_mul_u32_u24 v{vLA}, {XTS}, v{t}")
        e(f"v_add_u32 v{vLA}, v{vLA}, v{u}")

    def gemm(self, name, vS, vC, stride):
        o = self.o
        e = self.e
        vO, vLA, vAC, vAF, vL, vF, vOUT = 3, 4, 32, 56, [64, 80], 96, 48
        e(f"v_mul_u32_u24 v{vO}, {8*stride}, v{vS}")
        e(f"v_lshl_add_u32 v{vO}, v{vC}, 3, v{vO}")
        e(f"v_and_b32 v{vLA}, 7, v0")
        e(f"v_mul_u32_u24 v{vLA}, {XTS}, v{vLA}")
        e(f"v_lshl_add_u32 v{vLA}, v{vS}, 4, v{vLA}")
        for k in range(16):
            e(f"v_mov_b32 v{vAC+k}, 0")
        e("s_waitcnt lgkmcnt(0)")

        def loads(buf):
            for ee in range(8):
                if o["d_mlp"] < 16:
                    e(f"s_waitcnt vmcnt({o['d_mlp']-1})")
                e(f"buffer_load_dwordx2 v[{vL[buf]+2*ee}:{vL[buf]+2*ee+1}], v{vO}, s[{RA}:{RA+3}], s{sOFF} offen {o['pol_mlp']}")
                e(f"s_add_u32 s{sOFF}, s{sOFF}, {stride if ee < 7 else 25*stride}")
        e(f"s_mov_b32 s{sOFF}, 0")
        loads(0)
        e(f"s_mov_b32 s{sCNT}, 9")
        self.lab(f"L_{name}")
        for half in range(2):
            loads(1 - half)
            e(f"ds_read_b128 v[{vAF}:{vAF+3}], v{vLA} offset:{XT+64*half}")
            e("s_waitcnt vmcnt(8)")
            self.transpose(vF, vL[half], 2)
            e("s_waitcnt lgkmcnt(0)")
            e("s_nop 0")
            for u in range(4):
                e(f"v_mfma_f32_16x16x32_bf16 v[{vAC+4*u}:{vAC+4*u+3}], v[{vAF}:{vAF+3}], v[{vF+4*u}:{vF+4*u+3}], v[{vAC+4*u}:{vAC+4*u+3}]")
        e(f"v_add_u32 v{vLA}, 128, v{vLA}")
        e(f"s_sub_u32 s{sCNT}, s{sCNT}, 1")
        e(f"s_cmp_lg_u32 s{sCNT}, 0")
        e(f"s_cbranch_scc1 L_{name}")
        e("s_waitcnt vmcnt(0)")
        e("s_nop 3")
        for rr in range(2):
            for u in range(4):
                e(f"v_cndmask_b32 v{vOUT+4*rr+u}, v{vAC+4*u+rr}, v{vAC+4*u+2+rr}, s[{sMSK}:{sMSK+1}]")

    def out_row(self, v, vS, t):
        e = self.e
        e(f"v_and_b32 v{v}, 1, v{vS}")
        e(f"v_lshlrev_b32 v{v}, 2, v{v}")
        e(f"v_and_b32 v{t}, 2, v{vS}")
        e(f"v_add_u32 v{v}, v{v}, v{t}")

    def mlp1(self, vS, vC):
        e = self.e
        vT, vU, vMEAN, vVAR, vV, vW, vRC = 24, 25, 26, 27, 28, 29, 30
        vO, vLA, vB1, vBB, vX, vOUT = 3, 4, 8, 12, 64, 48
        self.c("first MLP matrix, columns 64 u .. +64; layer norm of all rows first")
        e(f"s_and_b32 s{sT0}, s2, 7")
        e(f"s_mul_i32 s{sT0}, s{sT0}, 9")
        e(f"s_add_u32 s{sU}, s{sU}, s{sT0}")
        e(f"s_lshl_b32 s{sU}, s{sU}, 7")
        self.srd(RA, sX, None, 8 * 1152)
        self.row_layout(vO, vLA, 1152, vT, vU)
        for t in range(9):
            e(f"buffer_load_dwordx4 v[{vX+4*t}:{vX+4*t+3}], v{vO}, s[{RA}:{RA+3}], 0 offen offset:{128*t}")
        self.srd(RC, sB1, f"s{sU}", 128)
        e(f"v_lshlrev_b32 v{vU}, 3, v{vC}")
        e(f"buffer_load_dwordx2 v[{vB1}:{vB1+1}], v{vU}, s[{RC}:{RC+3}], 0 offen")
        e(f"v_mov_b32 v{vMEAN}, 0")
        e(f"v_mov_b32 v{vVAR}, 0")
        e("s_waitcnt vmcnt(0)")
        for k in range(36):
            e(f"v_lshlrev_b32 v{vT}, 16, v{vX+k}")
            e(f"v_and_b32 v{vU}, 0xffff0000, v{vX+k}")
            e(f"v_add_f32 v{vMEAN}, v{vMEAN}, v{vT}")
            e(f"v_add_f32 v{vVAR}, v{vVAR}, v{vU}")
        e(f"v_add_f32 v{vMEAN}, v{vMEAN}, v{vVAR}")

        def red8(v):
            for mod in ("quad_perm:[1,0,3,2]", "quad_perm:[2,3,0,1]", "row_half_mirror"):
                e("s_nop 1")
                e(f"v_add_f32_dpp v{v}, v{v}, v{v} {mod} row_mask:0xf bank_mask:0xf")
        red8(vMEAN)
        e(f"v_mul_f32 v{vMEAN}, {f32(1/576)}, v{vMEAN}")
        e(f"v_mov_b32 v{vVAR}, 0")
        for k in range(36):
            e(f"v_lshlrev_b32 v{vT}, 16, v{vX+k}")
            e(f"v_and_b32 v{vU}, 0xffff0000, v{vX+k}")
            e(f"v_sub_f32 v{vT}, v{vT}, v{vMEAN}")
            e(f"v_sub_f32 v{vU}, v{vU}, v{vMEAN}")
            e(f"v_fmac_f32 v{vVAR}, v{vT}, v{vT}")
            e(f"v_fmac_f32 v{vVAR}, v{vU}, v{vU}")
        red8(vVAR)
        self.ln_finish(vMEAN, vVAR, vRC)
        for k in range(36):
            e(f"v_lshlrev_b32 v{vT}, 16, v{vX+k}")
            e(f"v_and_b32 v{vU}, 0xffff0000, v{vX+k}")
            e(f"v_sub_f32 v{vT}, v{vT}, v{vMEAN}")
            e(f"v_sub_f32 v{vU}, v{vU}, v{vMEAN}")
            e(f"v_cvt_pk_bf16_f32 v{vU}, v{vT}, v{vU}")
            e(f"v_lshlrev_b32 v{vT}, 16, v{vU}")
            e(f"v_and_b32 v{vU}, 0xffff0000, v{vU}")
            self.divide(vV, vT, vVAR, vRC, vW)
            self.divide(vT, vU, vVAR, vRC, vW)
            e(f"v_cvt_pk_bf16_f32 v{vX+k}, v{vV}, v{vT}")
        for t in range(9):
            e(f"ds_write_b128 v{vLA}, v[{vX+4*t}:{vX+4*t+3}] offset:{XT+128*t}")
        self.stamp(11, 31)
        self.srd(RA, sW1, f"s{sU}", 0)
        e(f"s_sub_u32 s{RA+2}, {576*9216}, s{sU}")
        self.gemm("g1", vS, vC, 9216)
        self.c("bias, gelu, publish")
        e(f"v_lshlrev_b32 v{vBB}, 16, v{vB1}")
        e(f"v_and_b32 v{vBB+1}, 0xffff0000, v{vB1}")
        e(f"v_lshlrev_b32 v{vBB+2}, 16, v{vB1+1}")
        e(f"v_and_b32 v{vBB+3}, 0xffff0000, v{vB1+1}")
        c1 = -2.0 * 0.7978845608028654 * LOG2E
        e(f"s_mov_b32 s{sT2}, {f32(c1 * 0.044715)}")
        e(f"v_mov_b32 v{vW}, {f32(c1)}")
        for k in range(8):
            a = vOUT + k
            self.rbf(a, a)
            e(f"v_add_f32 v{a}, v{a}, v{vBB+k%4}")
            self.rbf(a, a)
            e(f"v_mul_f32 v{vT}, v{a}, v{a}")
            e(f"v_fma_f32 v{vT}, v{vT}, s{sT2}, v{vW}")
            e(f"v_mul_f32 v{vT}, v{vT}, v{a}")
            self.sigmoid_mul(a, a, vT, vU)
        for k in range(4):
            e(f"v_cvt_pk_bf16_f32 v{vOUT+k}, v{vOUT+2*k}, v{vOUT+2*k+1}")
            e(f"v_min_u32 v{vOUT+k}, -2, v{vOUT+k}")
        self.out_row(vT, vS, vU)
        e(f"v_mul_u32_u24 v{vT}, 9216, v{vT}")
        e(f"v_lshl_add_u32 v{vT}, v{vC}, 3, v{vT}")
        self.wait_marked("mark1", vV, vW)
        e(f"s_add_u32 s{sT0}, s{sU}, {H_OFF}")
        e(f"s_add_u32 s{sT1}, s{sU}, {H_OFF+9216}")
        e(f"buffer_store_dwordx2 v[{vOUT}:{vOUT+1}], v{vT}, s[{RD}:{RD+3}], s{sT0} offen {self.o['pol_hm']}")
        e(f"buffer_store_dwordx2 v[{vOUT+2}:{vOUT+3}], v{vT}, s[{RD}:{RD+3}], s{sT1} offen {self.o['pol_hm']}")

    def mlp2(self, vS, vC):
        e = self.e
        vT, vU = 24, 25
        vO, vLA, vX, vOUT = 3, 4, 64, 48
        self.c("second MLP matrix, rows 576 (id % 8) .. +576, columns 64 u .. +64")
        e(f"s_and_b32 s{sCLR}, s2, 7")
        self.row_layout(vO, vLA, 9216, vT, vU)
        e(f"s_mul_i32 s{sT0}, s{sCLR}, 1152")
        e(f"s_add_u32 s{sT0}, s{sT0}, {H_OFF}")

        def loads():
            for t in range(9):
                e(f"buffer_load_dwordx4 v[{vX+4*t}:{vX+4*t+3}], v{vO}, s[{RD}:{RD+3}], s{sT0} offen offset:{128*t} sc1")
        self.poll("h", loads, vX, 36, vT, 64, 0x10000)
        for t in range(9):
            e(f"ds_write_b128 v{vLA}, v[{vX+4*t}:{vX+4*t+3}] offset:{XT+128*t}")
        self.stamp(12, 31)
        e(f"s_lshl_b32 s{sU}, s{sU}, 7")
        e(f"s_mul_i32 s{sT0}, s{sCLR}, {576*1152}")
        e(f"s_add_u32 s{sT0}, s{sT0}, s{sU}")
        self.srd(RA, sW2, f"s{sT0}", 0)
        e(f"s_sub_u32 s{RA+2}, {576*1152}, s{sU}")
        self.gemm("g2", vS, vC, 1152)
        for k in range(8):
            e(f"v_min_u32 v{vOUT+k}, -2, v{vOUT+k}")
        self.out_row(vT, vS, vU)
        e(f"v_mul_u32_u24 v{vT}, 2304, v{vT}")
        e(f"v_lshl_add_u32 v{vT}, v{vC}, 4, v{vT}")
        e(f"s_mul_i32 s{sT0}, s{sCLR}, {8*2304}")
        e(f"s_lshl_b32 s{sU}, s{sU}, 1")
        e(f"s_add_u32 s{sT0}, s{sT0}, s{sU}")
        e(f"s_add_u32 s{sT0}, s{sT0}, {M_OFF}")
        e(f"buffer_store_dwordx4 v[{vOUT}:{vOUT+3}], v{vT}, s[{RD}:{RD+3}], s{sT0} offen {self.o['pol_hm']}")
        e(f"buffer_store_dwordx4 v[{vOUT+4}:{vOUT+7}], v{vT}, s[{RD}:{RD+3}], s{sT0} offen offset:2304 {self.o['pol_hm']}")
        self.stamp(13, 31)

    def consumer_pre(self, vG, vXV, vCOL, vPL):
        e = self.e
        vT, vU, vCH, vGR, vMO = 24, 25, 26, 27, 28
        vB = 64
        self.c("this wave finishes 32 output columns of row b: line h of every partial")
        e(f"v_and_b32 v{vCH}, 7, v0")
        e(f"v_lshrrev_b32 v{vGR}, 3, v0")
        e(f"s_lshr_b32 s{sT0}, s{sH}, 2")
        e(f"s_lshl_b32 s{sT0}, s{sT0}, 7")
        e(f"s_and_b32 s{sT1}, s{sH}, 1")
        e(f"s_cmp_ge_u32 s{sH}, 16")
        e(f"s_cselect_b32 s{sT2}, 2, 3")
        e(f"v_lshlrev_b32 v{vCOL}, s{sT2}, v{vCH}")
        e(f"s_add_u32 s{sT2}, s{sT2}, 3")
        e(f"s_lshl_b32 s{sT1}, s{sT1}, s{sT2}")
        e(f"s_add_u32 s{sT0}, s{sT0}, s{sT1}")
        e(f"s_and_b32 s{sT1}, s{sH}, 2")
        e(f"s_lshl_b32 s{sT1}, s{sT1}, 1")
        e(f"s_add_u32 s{sT0}, s{sT0}, s{sT1}")
        e(f"v_add_u32 v{vCOL}, s{sT0}, v{vCOL}")
        e(f"v_mul_u32_u24 v{vMO}, {8*2304}, v{vGR}")
        e(f"v_lshl_add_u32 v{vMO}, v{vCOL}, 2, v{vMO}")
        e(f"v_mul_u32_u24 v{vPL}, 2304, v{vGR}")
        e(f"v_lshl_add_u32 v{vPL}, v{vCH}, 4, v{vPL}")
        e(f"s_mul_i32 s{sT0}, s{sB}, {32*2304}")
        e(f"s_lshl_b32 s{sT1}, s{sH}, 7")
        e(f"s_add_u32 s{sT0}, s{sT0}, s{sT1}")
        e(f"v_add_u32 v{vPL}, s{sT0}, v{vPL}")
        self.c("column of this lane after the reduction, in bytes of bf16")
        e(f"v_bfe_u32 v{vT}, v0, 5, 1")
        e(f"v_bfe_u32 v{vU}, v0, 4, 1")
        e(f"v_lshl_add_u32 v{vT}, v{vU}, 1, v{vT}")
        e(f"v_add_u32 v{vCOL}, v{vCOL}, v{vT}")
        e(f"v_lshlrev_b32 v{vCOL}, 1, v{vCOL}")
        e(f"s_mul_i32 s{sT0}, s{sB}, 1152")
        self.srd(RA, sX, f"s{sT0}", 1152)
        e(f"buffer_load_ushort v{vXV}, v{vCOL}, s[{RA}:{RA+3}], 0 offen")
        self.srd(RB, sB2, None, 1152)
        e(f"buffer_load_ushort v{vG}, v{vCOL}, s[{RB}:{RB+3}], 0 offen")
        self.srd(RA, sOUT, f"s{sT0}", 1152)
        self.c("the MLP partials are fetched once the streamers are well into their V loop")
        e(f"v_mov_b32 v{vU}, 0")
        self.lab("L_mid_poll")
        e("s_sleep 16")
        e(f"ds_read_b32 v{vT}, v{vU} offset:{FL}")
        e("s_waitcnt lgkmcnt(0)")
        e(f"v_readfirstlane_b32 s{sT0}, v{vT}")
        e(f"s_cmp_gt_u32 s{sT0}, {self.o['fl_iter']}")
        e("s_cbranch_scc1 L_mid_poll")
        e(f"s_mul_i32 s{sT0}, s{sB}, 2304")
        e(f"s_add_u32 s{sT0}, s{sT0}, {M_OFF}")

        def loads():
            e(f"buffer_load_dwordx4 v[{vB}:{vB+3}], v{vMO}, s[{RD}:{RD+3}], s{sT0} offen sc1")
        self.poll("m", loads, vB, 4, vT, 64, 1 if self.o["nomlp"] else 0x10000)
        e(f"v_lshlrev_b32 v{vXV}, 16, v{vXV}")
        e(f"v_lshlrev_b32 v{vG}, 16, v{vG}")
        self.treduce(vB)
        self.rbf(vB, vB)
        e(f"v_add_f32 v{vB}, v{vB}, v{vG}")
        self.rbf(vB, vB)
        e(f"v_mul_f32 v{vT}, {f32(-LOG2E)}, v{vB}")
        self.sigmoid_mul(vG, vB, vT, vU)
        self.rbf(vG, vG)

    def consumer_final(self, vG, vXV, vCOL, vPL):
        e = self.e
        vB, vT = 64, 24
        for t in range(1, 4):
            e(f"s_mov_b32 s{sT0+t-1}, {8*t*2304}")

        def loads():
            for t in range(4):
                so = "0" if t == 0 else f"s{sT0+t-1}"
                e(f"buffer_load_dwordx4 v[{vB+4*t}:{vB+4*t+3}], v{vPL}, s[{RD}:{RD+3}], {so} offen sc1")
        self.poll("fin", loads, vB, 16, vT, 0, 0x40000)
        for k in range(4):
            e(f"v_add_f32 v{vB+k}, v{vB+k}, v{vB+4+k}")
            e(f"v_add_f32 v{vB+8+k}, v{vB+8+k}, v{vB+12+k}")
        for k in range(4):
            e(f"v_add_f32 v{vB+k}, v{vB+k}, v{vB+8+k}")
        self.treduce(vB)
        self.rbf(vB, vB)
        e(f"v_mul_f32 v{vB}, v{vB}, v{vG}")
        self.rbf(vB, vB)
        e(f"v_add_f32 v{vB}, v{vB}, v{vXV}")
        e(f"v_cvt_pk_bf16_f32 v{vB}, v{vB}, v{vB}")
        e("s_mov_b32 exec_lo, 0x00ff00ff")
        e("s_mov_b32 exec_hi, 0x00ff00ff")
        e(f"buffer_store_short v{vB}, v{vCOL}, s[{RA}:{RA+3}], 0 offen {self.o['pol_out']}")
        e("s_mov_b64 exec, -1")

    def build(self, header):
        e = self.e
        self.L.extend(header)
        self.L.append(f"; @launch grid=(256,1,1) block=(512,1,1) lds={LDS_BYTES}")
        self.L.append('.amdgcn_target "amdgcn-amd-amdhsa--gfx950"')
        self.L.append(".text")
        self.L.append(f".globl {NAME}_kernel")
        self.L.append(".p2align 8")
        self.L.append(f".type {NAME}_kernel,@function")
        self.lab(f"{NAME}_kernel")
        if self.o["probe"] >= 0:
            e("s_memrealtime s[76:77]")
        e("s_load_dwordx16 s[8:23], s[0:1], 0")
        e("s_load_dwordx8 s[24:31], s[0:1], 64")
        e("s_load_dwordx2 s[32:33], s[0:1], 96")
        e("s_cmp_ge_u32 s2, 256")
        e("s_cbranch_scc1 L_exit")
        if self.o["hskew"]:
            e("s_bfe_u32 s5, s2, 0x20003")
            e(f"s_mul_i32 s5, s5, {self.o['hskew']}")
            e("s_add_u32 s5, s5, s2")
            e("s_and_b32 s5, s5, 7")
            e("s_and_b32 s2, s2, 0xf8")
            e("s_or_b32 s2, s2, s5")
        e("v_lshrrev_b32 v1, 6, v0")
        e("v_and_b32 v0, 63, v0")
        e(f"v_readfirstlane_b32 s{sWAVE}, v1")
        e(f"s_lshr_b32 s{sB}, s2, 5")
        e(f"s_and_b32 s{sH}, s2, 31")
        e(f"s_and_b32 s{sHW}, s{sWAVE}, 3")
        e(f"s_cmp_ge_u32 s{sWAVE}, 4")
        e("s_cbranch_scc1 L_helper")
        self.streamer()
        self.helper()
        self.lab("L_exit")
        e("s_endpgm")
        self.L.append('.section .rodata,"a"')
        self.L.append(".p2align 6")
        self.L.append(f".amdhsa_kernel {NAME}_kernel")
        for d in ("next_free_vgpr 256", "next_free_sgpr 96", "accum_offset 256",
                  "group_segment_fixed_size 0", "kernarg_size 104", "user_sgpr_count 2",
                  "user_sgpr_kernarg_segment_ptr 1", "system_sgpr_workgroup_id_x 1",
                  "float_denorm_mode_32 3"):
            self.L.append("  .amdhsa_" + d)
        self.L.append(".end_amdhsa_kernel")
        return "\n".join(self.L) + "\n"


def header():
    ref = open(f"cdna_kernels/{NAME}.s.ref").read().splitlines()
    return [l for l in ref if l.startswith(";") and "@launch" not in l]


def generate(**kw):
    return G(**kw).build(header())


if __name__ == "__main__":
    kw = {}
    out = f"cdna_kernels/{NAME}.s"
    for a in sys.argv[1:]:
        k, v = a.split("=", 1)
        if k == "out":
            out = v
        else:
            kw[k] = int(v) if v.lstrip("-").isdigit() else v
    open(out, "w").write(generate(**kw))
```

```python
import sys, struct

NAME = "recurrent_scan__mha_block_cached__dense_activation_gelu__decode"


def f32(x):
    return "0x%08x" % struct.unpack("<I", struct.pack("<f", x))[0]


DEFAULTS = dict(
    d_fill="5x62,6,7",
    d_k="5x12,6x4",
    d_klast="5x28,6,7,8,8",
    d_v="5x31,6",
    d_wq=4,
    d_wq2=3, n_wq2=0,
    skipst=1,
    d_wo=1,
    d_mlp=8,
    pol_kv="nt", pol_wq="", pol_wo="", pol_mlp="nt",
    pol_out="sc1", pol_fin="sc1", pol_pub="sc1", warm=1, pack=1, pol_clr="sc1", pol_hm="sc1",
    dtouch="",
    vat="",
    boost="4-7",
    fb="18:2:0:8,42:2:0:12",
    fb_b=2,
    fb_ns=16,
    fb_skip=99, fb_pub=2, fb_off=0,
    fb_even=2,
    pre=1,
    tlb=0,
    d_pre=6, pol_pre="",
    late=0,
    wqmap=1,
    hskew=0,
    stag=0,
    flag=0,
    pf=0,
    pol_pf="sc1",
    nclr=64,
    fl_iter=4,
    rot=1,
    g1=14, g2=23,
    nowo=0, nomlp=0, noclear=0, nowq=0, nox=0, noat=0,
    probe=-1, probe_wg=64,
    stamps=0,
)

QP = 0
OT = 2048
OTS = 288
ST = 3328
FL = 3360
PG = 3364
MD = 3368
XT = 4096
XTS = 1168
KB = 16384
LDS_BYTES = KB + 131072

P_OFF = 0
M_OFF = 256 * 2304
H_OFF = M_OFF + 64 * 2304
STAMP_OFF = 0x200000
F_OFF = H_OFF + 8 * 9216

sX, sK, sV, sWQ, sWO, sW1, sB1 = 8, 10, 12, 14, 16, 20, 22
sW2, sB2, sOUT, sDBG, sWS = 24, 26, 28, 30, 32
sWAVE, sB, sH, sHW = 3, 34, 35, 4
RA, RB, RC, RD = 36, 40, 44, 48
sU, sCLR, sMASK = 54, 55, 52
sROT = 84
sOFF, sCNT, sT0, sT1, sT2 = 56, 57, 58, 59, 60
sODD, sBIT1 = 62, 64
sPLO, sPHI, sDLO, sDHI = 66, 67, 68, 69
sMSK = 70
sTS = 72
sSP = 74
LOG2E = 1.4426950408889634


class G:
    def __init__(self, **kw):
        self.o = dict(DEFAULTS)
        for k in kw:
            assert k in self.o, k
        self.o.update(kw)
        self.L = []
        rounds = len(self.o["fb"].split(",")) if self.o["fb"] else 0
        self.ws_bytes = F_OFF + rounds * 256 // self.o["fb_pub"] * 128

    def e(self, s):
        self.L.append("    " + s)

    def lab(self, s):
        self.L.append(s + ":")

    def c(self, s):
        self.L.append("    ; " + s)

    def depth(self, key, n):
        p = []
        for t in str(self.o[key]).split(","):
            d, _, k = t.partition("x")
            p += [int(d)] * int(k or 1)
        return p[n % len(p)]

    def srd(self, r, ptr, off=None, nrec=0):
        if off is None:
            self.e(f"s_mov_b32 s{r}, s{ptr}")
            self.e(f"s_and_b32 s{r+1}, s{ptr+1}, 0xffff")
        else:
            self.e(f"s_add_u32 s{r}, s{ptr}, {off}")
            self.e(f"s_addc_u32 s{r+1}, s{ptr+1}, 0")
            self.e(f"s_and_b32 s{r+1}, s{r+1}, 0xffff")
        self.e(f"s_mov_b32 s{r+2}, {nrec}")
        self.e(f"s_mov_b32 s{r+3}, 0x20000")

    def stamp(self, idx, vs):
        if self.o["probe"] == idx and vs == 31:
            self.e("s_memrealtime s[78:79]")
            self.e("s_waitcnt lgkmcnt(0)")
        if not self.o["stamps"]:
            return
        self.e(f"s_memrealtime s[{sTS}:{sTS+1}]")
        self.e("s_waitcnt lgkmcnt(0)")
        self.e(f"v_writelane_b32 v{vs}, s{sTS}, {idx}")

    def stamp_iter(self, base, vs):
        if not self.o["stamps"]:
            return
        self.e(f"s_memrealtime s[{sTS}:{sTS+1}]")
        self.e(f"s_sub_u32 m0, {base + 7}, s{sCNT}")
        self.e("s_waitcnt lgkmcnt(0)")
        self.e(f"v_writelane_b32 v{vs}, s{sTS}, m0")

    def stamp_flush(self, vs, vt):
        if not self.o["stamps"]:
            return
        self.e("s_mov_b64 exec, -1")
        self.e(f"s_getreg_b32 s{sT0}, hwreg(HW_REG_XCC_ID)")
        self.e(f"v_writelane_b32 v{vs}, s{sT0}, 31")
        self.e(f"s_lshl_b32 s{sT0}, s2, 3")
        self.e(f"s_add_u32 s{sT0}, s{sT0}, s{sWAVE}")
        self.e(f"s_xor_b32 s{sT0}, s{sT0}, 4")
        self.e(f"s_lshl_b32 s{sT0}, s{sT0}, 8")
        self.e(f"s_add_u32 s{sT0}, s{sT0}, {STAMP_OFF}")
        self.e(f"v_lshlrev_b32 v{vt}, 2, v0")
        self.e(f"v_add_u32 v{vt}, s{sT0}, v{vt}")
        self.e(f"global_store_dword v{vt}, v{vs}, s[{sWS}:{sWS+1}]")
        self.e("s_waitcnt vmcnt(0)")

    def allreduce(self, op, v, t):
        for mod in ("quad_perm:[1,0,3,2]", "quad_perm:[2,3,0,1]", "row_half_mirror", "row_mirror"):
            self.e("s_nop 1")
            self.e(f"{op}_dpp v{v}, v{v}, v{v} {mod} row_mask:0xf bank_mask:0xf")
        for sw in ("v_permlane16_swap_b32", "v_permlane32_swap_b32"):
            self.e(f"v_mov_b32 v{t}, v{v}")
            self.e("s_nop 1")
            self.e(f"{sw} v{t}, v{v}")
            self.e("s_nop 1")
            self.e(f"{op} v{v}, v{v}, v{t}")

    def masks(self, vm, t0, t1):
        self.e(f"v_and_b32 v{t0}, 1, v0")
        self.e(f"v_lshlrev_b32 v{t0}, 4, v{t0}")
        self.e(f"v_mov_b32 v{t1}, 0xffff")
        self.e(f"v_lshlrev_b32 v{t0}, v{t0}, v{t1}")
        self.e(f"v_bfe_u32 v{t1}, v0, 1, 2")
        for r in range(4):
            self.e(f"v_cmp_eq_u32 vcc, {r}, v{t1}")
            self.e("s_nop 1")
            self.e(f"v_cndmask_b32 v{vm+r}, 0, v{t0}, vcc")

    def rbf(self, dst, src):
        self.e(f"v_cvt_pk_bf16_f32 v{dst}, v{src}, v{src}")
        self.e(f"v_and_b32 v{dst}, 0xffff0000, v{dst}")

    def ln_finish(self, vMEAN, vVAR, vT):
        e = self.e
        e(f"v_mul_f32 v{vVAR}, {f32(1/576)}, v{vVAR}")
        self.rbf(vMEAN, vMEAN)
        self.rbf(vVAR, vVAR)
        e(f"v_add_f32 v{vVAR}, {f32(1e-5)}, v{vVAR}")
        self.rbf(vVAR, vVAR)
        e(f"v_sqrt_f32 v{vVAR}, v{vVAR}")
        e("s_nop 0")
        self.rbf(vVAR, vVAR)
        e(f"v_rcp_f32 v{vT}, v{vVAR}")
        e("s_nop 0")

    def divide(self, dst, num, den, rcp, tmp):
        e = self.e
        e(f"v_mul_f32 v{dst}, v{num}, v{rcp}")
        e(f"v_fma_f32 v{tmp}, -v{dst}, v{den}, v{num}")
        e(f"v_fmac_f32 v{dst}, v{tmp}, v{rcp}")

    def transpose(self, dst, src, w):
        for m in range(w):
            for r in range(4):
                lo, hi = src + 2 * w * r + m, src + 2 * w * r + w + m
                self.e(f"v_perm_b32 v{dst+8*m+r}, v{hi}, v{lo}, s{sPLO}")
                self.e(f"v_perm_b32 v{dst+8*m+4+r}, v{hi}, v{lo}, s{sPHI}")

    def sigmoid_mul(self, dst, x, arg, t):
        e = self.e
        e(f"v_exp_f32 v{t}, v{arg}")
        e("s_nop 0")
        e(f"v_add_f32 v{t}, 1.0, v{t}")
        e(f"v_rcp_f32 v{t}, v{t}")
        e("s_nop 0")
        e(f"v_mul_f32 v{dst}, v{x}, v{t}")

    def treduce(self, v):
        e = self.e
        e("s_nop 1")
        e(f"v_permlane32_swap_b32 v{v}, v{v+1}")
        e(f"v_permlane32_swap_b32 v{v+2}, v{v+3}")
        e("s_nop 0")
        e(f"v_add_f32 v{v}, v{v}, v{v+1}")
        e(f"v_add_f32 v{v+2}, v{v+2}, v{v+3}")
        e("s_nop 1")
        e(f"v_permlane16_swap_b32 v{v}, v{v+2}")
        e("s_nop 1")
        e(f"v_add_f32 v{v}, v{v}, v{v+2}")
        e("s_nop 1")
        e(f"v_add_f32_dpp v{v}, v{v}, v{v} row_ror:8 row_mask:0xf bank_mask:0xf")

    def touch(self, name, ptr):
        e = self.e
        e(f"s_cmp_eq_u32 s{sHW}, 3")
        e(f"s_cbranch_scc1 L_notouch{name}")
        e(f"s_mul_i32 s{sT0}, s2, 20736")
        e(f"s_mul_i32 s{sT1}, s{sHW}, 6912")
        e(f"s_add_u32 s{sT0}, s{sT0}, s{sT1}")
        self.srd(RC, ptr, f"s{sT0}", 6912)
        e(f"v_lshlrev_b32 v24, 4, v0")
        e(f"s_mov_b32 s{sT1}, 4096")
        for k in range(7):
            if k >= 2:
                e("s_waitcnt vmcnt(1)")
            e(f"buffer_load_dwordx4 v[{104+4*(k&1)}:{107+4*(k&1)}], v24, s[{RC}:{RC+3}], {'0' if k < 4 else 's%d' % sT1} offen offset:{1024*(k%4)} {self.o['pol_pf']}")
        e("s_waitcnt vmcnt(0)")
        self.lab(f"L_notouch{name}")

    def wait_marked(self, name, t, u):
        e = self.e
        if self.o["noat"]:
            return
        self.c("no slot is written or read before all of them are marked empty")
        e(f"s_mov_b32 s{sSP}, 0x40000")
        if self.o["flag"]:
            ncl = self.o["nclr"]
            self.srd(RC, sDBG, None, 256)
            e(f"v_and_b32 v{t}, {ncl-1}, v0")
            e(f"v_lshlrev_b32 v{t}, 2, v{t}")
            e(f"buffer_load_dword v{u}, v{t}, s[{RC}:{RC+3}], 0 offen")
            self.lab(f"L_{name}_poll")
            e("s_waitcnt vmcnt(0)")
            e(f"v_cmp_eq_u32 vcc, 0, v{u}")
            e(f"s_sub_u32 s{sSP}, s{sSP}, 1")
            e(f"s_cbranch_vccz L_{name}_go")
            e("s_sleep 64")
            e(f"v_mov_b32 v{u}, 0")
            e(f"buffer_atomic_add v{u}, v{t}, s[{RC}:{RC+3}], 0 offen sc0 sc1")
            e(f"s_cmp_lg_u32 s{sSP}, 0")
            e(f"s_cbranch_scc1 L_{name}_poll")
            e("s_waitcnt vmcnt(0)")
        else:
            e(f"s_load_dword s{sT2}, s[{sDBG}:{sDBG+1}], 0")
            self.lab(f"L_{name}_poll")
            e("s_waitcnt lgkmcnt(0)")
            e(f"s_cmp_ge_u32 s{sT2}, {self.o['nclr']}")
            e(f"s_cbranch_scc1 L_{name}_go")
            e("s_sleep 64")
            e(f"s_mov_b32 s{sT2}, 0")
            e(f"s_atomic_add s{sT2}, s[{sDBG}:{sDBG+1}], 0 glc")
            e(f"s_sub_u32 s{sSP}, s{sSP}, 1")
            e(f"s_cmp_lg_u32 s{sSP}, 0")
            e(f"s_cbranch_scc1 L_{name}_poll")
            e("s_waitcnt lgkmcnt(0)")
        self.lab(f"L_{name}_go")

    def poll(self, name, loads, v, n, t, sleep, bound):
        e = self.e
        e(f"s_mov_b32 s{sSP}, {bound}")
        self.lab(f"L_{name}_poll")
        loads()
        e("s_waitcnt vmcnt(0)")
        e(f"v_max_u32 v{t}, v{v}, v{v+1}")
        for k in range(1, n // 2):
            e(f"v_max3_u32 v{t}, v{t}, v{v+2*k}, v{v+2*k+1}")
        e(f"v_cmp_eq_u32 vcc, -1, v{t}")
        e(f"s_sub_u32 s{sSP}, s{sSP}, 1")
        e(f"s_cbranch_vccz L_{name}_go")
        if sleep:
            e(f"s_sleep {sleep}")
        e(f"s_cmp_lg_u32 s{sSP}, 0")
        e(f"s_cbranch_scc1 L_{name}_poll")
        self.lab(f"L_{name}_go")

    def weight_pass_setup(self):
        e = self.e
        self.c("lane offsets of the weight pass: v4 linear, v5 w1 rows, v6 w1 row ends, v7 wq rows")
        e("v_lshlrev_b32 v5, 4, v0")
        e(f"s_lshl_b32 s{sT1}, s{sHW}, 10")
        e(f"v_add_u32 v4, s{sT1}, v5")
        e(f"s_mul_i32 s{sT1}, s{sHW}, 9216")
        e(f"v_add_u32 v5, s{sT1}, v5")
        e("v_lshrrev_b32 v6, 3, v0")
        e("v_mul_u32_u24 v6, 9216, v6")
        e("v_and_b32 v7, 7, v0")
        e("v_lshl_add_u32 v6, v7, 4, v6")
        e(f"s_lshl_b32 s{sT1}, s{sT1}, 3")
        e(f"s_add_u32 s{sT1}, s{sT1}, 1024")
        e(f"v_add_u32 v6, s{sT1}, v6")
        e("v_lshrrev_b32 v7, 4, v0")
        e("v_lshlrev_b32 v7, 13, v7")
        e("v_and_b32 v8, 15, v0")
        e("v_lshl_add_u32 v7, v8, 4, v7")
        e(f"s_lshl_b32 s{sT1}, s{sHW}, 15")
        e(f"v_add_u32 v7, s{sT1}, v7")
        e(f"s_and_b32 s{sU}, s2, 7")
        e(f"s_lshr_b32 s{sCLR}, s2, 3")

    def weight_pass(self, dst):
        e = self.e
        d = self.o["d_pre"]
        n = [0]

        def ld(v, srd, so):
            if n[0] >= d:
                e(f"s_waitcnt vmcnt({d-1})")
            if so:
                e(f"s_mov_b32 s{sOFF}, {so}")
            e(f"buffer_load_dwordx4 v[{dst}:{dst+3}], v{v}, s[{srd}:{srd+3}], {'s%d' % sOFF if so else '0'} offen {self.o['pol_pre']}")
            n[0] += 1
        e(f"s_mul_i32 s{sT0}, s{sCLR}, {18*9216}")
        e(f"s_mul_i32 s{sT1}, s{sU}, 1152")
        e(f"s_add_u32 s{sT0}, s{sT0}, s{sT1}")
        self.srd(RA, sW1, f"s{sT0}", 17 * 9216 + 1152)
        for k in range(5):
            ld(5, RA, 4 * k * 9216)
        ld(6, RA, 0)
        e(f"s_lshl_b32 s{sT0}, s{sB}, 16")
        e(f"s_lshl_b32 s{sT1}, s{sH}, 8")
        e(f"s_add_u32 s{sT0}, s{sT0}, s{sT1}")
        e(f"s_add_u32 s{sT0}, s{sT0}, {512*8192}")
        self.srd(RB, sWQ, f"s{sT0}", 7 * 8192 + 256)
        ld(7, RB, 0)
        e(f"s_lshl_b32 s{sT0}, s{sH}, 3")
        e(f"s_add_u32 s{sT0}, s{sT0}, s{sB}")
        e(f"s_mul_i32 s{sT0}, s{sT0}, 18432")
        self.srd(RC, sWO, f"s{sT0}", 18432)
        for k in range(5):
            ld(4, RC, 4096 * k)
        e(f"s_lshl_b32 s{sT0}, s{sU}, 5")
        e(f"s_add_u32 s{sT0}, s{sT0}, s{sCLR}")
        e(f"s_mul_i32 s{sT0}, s{sT0}, 20736")
        self.srd(RD, sW2, f"s{sT0}", 20736)
        for k in range(6):
            ld(4, RD, 4096 * k)
        return n[0]

    def streamer(self):
        o = self.o
        e = self.e
        vOFF, vQ, vM, vA, vACC, vPA, vPB, vT, vR0, vMX, vR2, vST, vS, vP = \
            1, 4, 8, 12, 20, 24, 25, 26, 27, 28, 29, 30, 32, 40
        vP2, vTMP, vLA, vRING = 72, 88, 3, 128
        R = 32
        pol = o["pol_kv"]

        def ring(n):
            return f"v[{vRING+4*n}:{vRING+4*n+3}]"

        bo = range(*map(int, o["boost"].split("-"))) if o["boost"] else ()
        self.nlab = 0

        vONE, vMD = 104, 105

        def gate(key, n):
            d = self.depth(key, n)
            if o["fb"] and key == "d_v":
                self.nlab += 1
                if n % 4 == 0:
                    e(f"ds_add_u32 v{vR2}, v{vONE} offset:{PG-FL}")
                if n % 16 == 1:
                    e(f"ds_read_b32 v{vMD}, v{vR2} offset:{MD-FL}")
                if n % 16 == 2:
                    e("s_waitcnt lgkmcnt(0)")
                    e(f"v_readfirstlane_b32 s{sMASK}, v{vMD}")
                e(f"s_bitcmp1_b32 s{sMASK}, {(n - 3) % 32}")
                e(f"s_cbranch_scc1 L_bo{self.nlab}")
                e(f"s_waitcnt vmcnt({d-1})")
                self.lab(f"L_bo{self.nlab}")
                e(f"s_waitcnt vmcnt({d-1+o['fb_b']})")
            elif n in bo:
                self.nlab += 1
                e(f"s_cbranch_vccz L_bo{self.nlab}")
                e(f"s_waitcnt vmcnt({d-1})")
                self.lab(f"L_bo{self.nlab}")
                e(f"s_waitcnt vmcnt({d})")
            else:
                e(f"s_waitcnt vmcnt({d-1})")

        def load(n, srd):
            e(f"buffer_load_dwordx4 {ring(n)}, v{vOFF}, s[{srd}:{srd+3}], s{sOFF} offen offset:{(n%4)*1024} {pol}")
            if n % 4 == 3:
                e(f"s_add_u32 s{sOFF}, s{sOFF}, 16384")

        e("s_setprio 3")
        e(f"s_lshl_b32 s{sT1}, s{sHW}, 12")
        e(f"v_lshlrev_b32 v{vOFF}, 4, v0")
        e(f"v_add_u32 v{vOFF}, s{sT1}, v{vOFF}")
        self.c("the last eighth of this wave's keys goes to LDS, the first eighth to the register ring")
        e(f"s_lshl_b32 s{sT1}, s{sHW}, 15")
        e(f"s_add_u32 m0, s{sT1}, {KB}")
        if o["pre"]:
            self.weight_pass_setup()
        e("s_waitcnt lgkmcnt(0)")
        if o["stamps"]:
            e(f"v_mov_b32 v{vST}, 0")
        self.stamp(0, vST)
        npre = self.weight_pass(vRING) if o["pre"] else 0
        e(f"s_lshl_b32 s{sT0}, s2, 20")
        self.srd(RA, sK, f"s{sT0}", 1 << 20)
        e(f"s_mov_b32 s{sOFF}, {7*131072}")
        self.stamp(25, vST)
        d0 = self.depth("d_fill", 0)
        for nn in range(2 * R):
            n = nn % R
            if nn + npre >= d0:
                e(f"s_waitcnt vmcnt({self.depth('d_fill', nn)-1})")
            if nn in (16, 32, 48):
                self.stamp(7 + nn // 16, vST)
            if nn < R:
                e(f"buffer_load_dwordx4 v{vOFF}, s[{RA}:{RA+3}], s{sOFF} offen offset:{(n%4)*1024} {pol} lds")
                if n % 4 == 3:
                    e("s_add_u32 m0, m0, 4096")
                    e(f"s_add_u32 s{sOFF}, s{sOFF}, 16384" if n < R - 1 else f"s_mov_b32 s{sOFF}, 0")
            else:
                load(n, RA)
            if nn == d0 - 1:
                self.srd(RB, sV, f"s{sT0}", 1 << 20)
                self.masks(vM, vT, vR0)
                e(f"s_mov_b32 s{sODD}, 0xaaaaaaaa")
                e(f"s_mov_b32 s{sODD+1}, 0xaaaaaaaa")
                e(f"s_mov_b32 s{sBIT1}, 0xcccccccc")
                e(f"s_mov_b32 s{sBIT1+1}, 0xcccccccc")
                e(f"s_mov_b32 s{sDLO}, 0x01000100")
                e(f"s_mov_b32 s{sDHI}, 0x03020302")
                e("v_and_b32 v2, 15, v0")
                e("v_lshlrev_b32 v2, 5, v2")
                for k in range(8):
                    e(f"v_mov_b32 v{vS+k}, 0")
                if bo:
                    e(f"s_getreg_b32 s{sT1}, hwreg(HW_REG_XCC_ID)")
                    e(f"s_and_b32 s{sT2}, s{sT1}, 1")
                    e(f"s_mov_b32 s{sT2+1}, 0")
                    e(f"s_mov_b64 vcc, s[{sT2}:{sT2+1}]")
        self.stamp(1, vST)
        e("s_barrier")
        self.stamp(2, vST)
        self.c("q = bf16(sum of the four helper partials), elements 8c..8c+7")
        for w in range(4):
            e(f"ds_read_b128 v[{vP+8*w}:{vP+8*w+3}], v2 offset:{QP+512*w}")
            e(f"ds_read_b128 v[{vP+8*w+4}:{vP+8*w+7}], v2 offset:{QP+512*w+16}")
        e("s_waitcnt lgkmcnt(0)")
        for k in range(8):
            e(f"v_add_f32 v{vP+k}, v{vP+k}, v{vP+8+k}")
            e(f"v_add_f32 v{vP+16+k}, v{vP+16+k}, v{vP+24+k}")
        for k in range(8):
            e(f"v_add_f32 v{vP+k}, v{vP+k}, v{vP+16+k}")
        for k in range(4):
            e(f"v_cvt_pk_bf16_f32 v{vQ+k}, v{vP+2*k}, v{vP+2*k+1}")

        def reduce16(dst, base):
            p = lambda j: f"v{base+j}"
            full = "row_mask:0xf bank_mask:0xf"
            for m in range(8):
                a, b = p(2 * m), p(2 * m + 1)
                e(f"v_add_f32_dpp {a}, {a}, {a} row_ror:8 row_mask:0xf bank_mask:0x3")
                e(f"v_add_f32_dpp {a}, {b}, {b} row_ror:8 row_mask:0xf bank_mask:0xc")
            for m in range(4):
                a, b = p(4 * m), p(4 * m + 2)
                e(f"v_add_f32_dpp {a}, {a}, {a} row_shl:4 row_mask:0xf bank_mask:0x5")
                e(f"v_add_f32_dpp {a}, {b}, {b} row_shr:4 row_mask:0xf bank_mask:0xa")
            for j in (0, 4, 8, 12):
                e(f"v_add_f32_dpp {p(j)}, {p(j)}, {p(j)} quad_perm:[1,0,3,2] {full}")
            e(f"v_cndmask_b32 {p(0)}, {p(0)}, {p(4)}, s[{sODD}:{sODD+1}]")
            e(f"v_cndmask_b32 {p(8)}, {p(8)}, {p(12)}, s[{sODD}:{sODD+1}]")
            e("s_nop 0")
            e(f"v_add_f32_dpp {p(0)}, {p(0)}, {p(0)} quad_perm:[2,3,0,1] {full}")
            e(f"v_add_f32_dpp {p(8)}, {p(8)}, {p(8)} quad_perm:[2,3,0,1] {full}")
            e(f"v_cndmask_b32 v{dst}, {p(0)}, {p(8)}, s[{sBIT1}:{sBIT1+1}]")

        def dots(dst, b):
            e(f"v_dot2_f32_bf16 v{dst}, v{b}, v{vQ}, 0")
            for k in range(1, 4):
                e(f"v_dot2_f32_bf16 v{dst}, v{b+k}, v{vQ+k}, v{dst}")

        def scores(r0, r1):
            self.c("scores: bf16(dot), times Dh^-0.5, bf16 again")
            e(f"v_cvt_pk_bf16_f32 v{vT}, v{r0}, v{r1}")
            e(f"v_lshlrev_b32 v{r0}, 16, v{vT}")
            e(f"v_and_b32 v{vT}, 0xffff0000, v{vT}")
            e(f"v_mul_f32 v{r0}, {f32(128 ** -0.5)}, v{r0}")
            e(f"v_mul_f32 v{vT}, {f32(128 ** -0.5)}, v{vT}")
            for k in range(7):
                e(f"v_mov_b32 v{vS+k}, v{vS+k+1}")
            e(f"v_cvt_pk_bf16_f32 v{vS+7}, v{r0}, v{vT}")

        def ldsread(n):
            t = vTMP + 4 * (n % 4)
            e(f"ds_read_b128 v[{t}:{t+3}], v{vLA} offset:{1024*n}")

        def kbody(key, srd, with_lds=False):
            if with_lds:
                e(f"s_lshl_b32 s{sT1}, s{sHW}, 15")
                e(f"s_add_u32 s{sT1}, s{sT1}, {KB}")
                e(f"v_lshlrev_b32 v{vLA}, 4, v0")
                e(f"v_add_u32 v{vLA}, s{sT1}, v{vLA}")
                for n in range(3):
                    ldsread(n)
            for n in range(R):
                j = n % 16
                gate(key, n)
                dots(vP + j, vRING + 4 * n)
                load(n, srd)
                if with_lds:
                    if n + 3 < R:
                        ldsread(n + 3)
                    e(f"s_waitcnt lgkmcnt({min(3, R-1-n)})")
                    dots(vP2 + j, vTMP + 4 * (n % 4))
                if n == 15:
                    reduce16(vR0, vP)
                    if with_lds:
                        reduce16(vR2, vP2)
            reduce16(vP, vP)
            scores(vR0, vP)
            if with_lds:
                reduce16(vP2, vP2)
                scores(vR2, vP2)

        e(f"s_mov_b32 s{sCNT}, 6")
        self.stamp(11, vST)
        self.lab("L_k")
        kbody("d_k", RA)
        self.stamp_iter(11, vST)
        e(f"s_sub_u32 s{sCNT}, s{sCNT}, 1")
        e(f"s_cmp_lg_u32 s{sCNT}, 0")
        e("s_cbranch_scc1 L_k")
        self.stamp(3, vST)
        e(f"s_mov_b32 s{sOFF}, 0")
        kbody("d_klast", RB, with_lds=True)
        self.stamp(4, vST)
        self.c("softmax numerators against this wave's maximum")
        for k in range(8):
            e(f"v_lshlrev_b32 v{vP+2*k}, 16, v{vS+k}")
            e(f"v_and_b32 v{vP+2*k+1}, 0xffff0000, v{vS+k}")
        e(f"v_max_f32 v{vMX}, v{vP}, v{vP+1}")
        for k in range(1, 8):
            e(f"v_max3_f32 v{vMX}, v{vMX}, v{vP+2*k}, v{vP+2*k+1}")
        self.allreduce("v_max_f32", vMX, vT)
        for k in range(16):
            e(f"v_sub_f32 v{vP+k}, v{vP+k}, v{vMX}")
        for k in range(16):
            e(f"v_mul_f32 v{vP+k}, {f32(LOG2E)}, v{vP+k}")
        for k in range(16):
            e(f"v_exp_f32 v{vP+k}, v{vP+k}")
        e("s_nop 0")
        for k in range(8):
            e(f"v_cvt_pk_bf16_f32 v{vS+k}, v{vP+2*k}, v{vP+2*k+1}")
        for k in range(8):
            e(f"v_add_f32 v{vP+k}, v{vP+k}, v{vP+8+k}")
        for k in range(4):
            e(f"v_add_f32 v{vP+k}, v{vP+k}, v{vP+4+k}")
        e(f"v_add_f32 v{vP}, v{vP}, v{vP+2}")
        e(f"v_add_f32 v{vP+1}, v{vP+1}, v{vP+3}")
        e(f"v_add_f32 v{vP}, v{vP}, v{vP+1}")
        self.allreduce("v_add_f32", vP, vT)
        e(f"s_lshl_b32 s{sT1}, s{sHW}, 2")
        e(f"v_mov_b32 v{vT}, s{sT1}")
        e(f"v_min_u32 v{vP}, -2, v{vP}")
        e(f"ds_write_b32 v{vT}, v{vMX} offset:{ST}")
        e(f"ds_write_b32 v{vT}, v{vP} offset:{ST+16}")
        e(f"v_mov_b32 v{vR2}, {FL}")
        if o["fb"]:
            e(f"v_sub_u32 v{vONE}, 1, v0")
            e(f"v_max_i32 v{vONE}, 0, v{vONE}")
            e(f"s_mov_b32 s{sMASK}, 0")
        for r in range(4):
            e(f"v_mov_b32 v{vACC+r}, 0")
        self.c("address in this wave's row of the o table, in the order the wo rows were loaded")
        if o["rot"]:
            e(f"s_lshr_b32 s{sT1}, s{sB}, 1")
            e(f"s_lshl_b32 s{sT1}, s{sT1}, 2")
            e(f"v_subrev_u32 v2, s{sT1}, v0")
            e("v_and_b32 v2, 15, v2")
            e("v_lshrrev_b32 v3, 4, v0")
            e(f"v_xor_b32 v3, s{sB}, v3")
            e("v_and_b32 v3, 1, v3")
        else:
            e("v_and_b32 v2, 15, v0")
            e("v_bfe_u32 v3, v0, 4, 1")
        e("v_lshlrev_b32 v2, 4, v2")
        e("v_lshl_add_u32 v2, v3, 3, v2")
        e(f"s_mul_i32 s{sT1}, s{sHW}, {OTS}")
        e(f"v_add_u32 v2, s{sT1}, v2")
        self.stamp(5, vST)

        def cof(j):
            return 8 * (j & 1) + 4 * ((j >> 1) & 1) + ((j >> 2) & 1) + 2 * ((j >> 3) & 1)

        def abuild(n):
            pp = vPA if n < 16 else vPB
            a = vA + 4 * (n & 1)
            for r in range(4):
                e(f"v_and_b32_dpp v{a+r}, v{pp}, v{vM+r} row_newbcast:{cof(n%16)} row_mask:0xf bank_mask:0xf")

        def vbody(drain):
            e(f"v_perm_b32 v{vPA}, v{vS}, v{vS}, s{sDLO}")
            e(f"v_perm_b32 v{vPB}, v{vS}, v{vS}, s{sDHI}")
            if not drain:
                for k in range(7):
                    e(f"v_mov_b32 v{vS+k}, v{vS+k+1}")
            else:
                e("s_nop 0")
            abuild(0)
            e("s_nop 0")
            for n in range(R):
                a = vA + 4 * (n & 1)
                if drain:
                    e(f"s_waitcnt vmcnt({R-1-n})")
                else:
                    gate("d_v", n)
                e(f"v_mfma_f32_16x16x32_bf16 v[{vACC}:{vACC+3}], v[{a}:{a+3}], {ring(n)}, v[{vACC}:{vACC+3}]")
                if n + 1 < R:
                    abuild(n + 1)
                if drain:
                    e("s_nop 0")
                else:
                    load(n, RB)

        e(f"s_mov_b32 s{sCNT}, 7")
        self.lab("L_v")
        e(f"v_mov_b32 v{vT}, s{sCNT}")
        e(f"ds_write_b32 v{vR2}, v{vT}")
        vbody(False)
        self.stamp_iter(18, vST)
        e(f"s_sub_u32 s{sCNT}, s{sCNT}, 1")
        e(f"s_cmp_lg_u32 s{sCNT}, 0")
        e("s_cbranch_scc1 L_v")
        self.stamp(6, vST)
        vbody(True)
        e("s_nop 7")
        e(f"v_cvt_pk_bf16_f32 v{vACC}, v{vACC}, v{vACC+1}")
        e(f"v_cvt_pk_bf16_f32 v{vACC+1}, v{vACC+2}, v{vACC+3}")
        e(f"ds_write_b64 v2, v[{vACC}:{vACC+1}] offset:{OT}")
        e("s_waitcnt lgkmcnt(0)")
        self.stamp(7, vST)
        e("s_barrier")
        self.stamp_flush(vST, vT)
        e("s_endpgm")

    def helper(self):
        o = self.o
        e = self.e
        vST = 31
        vS, vC = 1, 2
        vXO, vWO = 3, 4
        vM, vA, vACC = 8, 12, 20
        vT, vU, vMEAN, vVAR = 24, 25, 26, 27
        vX = 32
        vD = 44
        vW = 64
        dq = o["d_wq"]
        vE, vEO = 56, 60
        self.lab("L_helper")
        ncl = o["nclr"]
        for r in range(4):
            e(f"v_mov_b32 v{vE+r}, -1")
        e(f"v_lshlrev_b32 v{vEO}, 4, v0")
        e(f"s_lshr_b32 s{sT0}, s2, {(2048 // ncl).bit_length() - 1}")
        e(f"s_lshl_b32 s{sT0}, s{sT0}, 3")
        e(f"s_and_b32 s{sT1}, s2, 7")
        e(f"s_add_u32 s{sT0}, s{sT0}, s{sT1}")
        e(f"s_lshl_b32 s{sT0}, s{sT0}, 2")
        e(f"s_add_u32 s{sT0}, s{sT0}, s{sHW}")
        e(f"s_lshl_b32 s{sCLR}, s{sT0}, 10")
        e("s_waitcnt lgkmcnt(0)")
        if o["stamps"]:
            e(f"v_mov_b32 v{vST}, 0")
        self.stamp(0, vST)
        self.srd(RD, sWS, None, self.ws_bytes)
        if o["tlb"]:
            self.c("first access to pages the streamers reach later; the values are not used")
            e(f"s_lshl_b32 s{sT0}, s{sH}, 3")
            e(f"s_add_u32 s{sT0}, s{sT0}, s{sB}")
            e(f"s_mul_i32 s{sT0}, s{sT0}, 18432")
            e(f"s_and_b32 s{sT1}, s2, 7")
            e(f"s_lshl_b32 s{sT1}, s{sT1}, 5")
            e(f"s_lshr_b32 s{sT2}, s2, 3")
            e(f"s_add_u32 s{sT1}, s{sT1}, s{sT2}")
            e(f"s_mul_i32 s{sT1}, s{sT1}, 20736")
            e(f"s_lshl_b32 s{sT2}, s2, 20")
            e(f"s_bitcmp1_b32 s{sHW}, 0")
            e(f"s_cselect_b64 s[{RA}:{RA+1}], s[{sW2}:{sW2+1}], s[{sWO}:{sWO+1}]")
            e(f"s_cselect_b64 s[{RB}:{RB+1}], s[{sV}:{sV+1}], s[{sK}:{sK+1}]")
            e(f"s_cselect_b32 s{sT0}, s{sT1}, s{sT0}")
            e(f"s_bitcmp1_b32 s{sHW}, 1")
            e(f"s_cselect_b64 s[{RA}:{RA+1}], s[{RB}:{RB+1}], s[{RA}:{RA+1}]")
            e(f"s_cselect_b32 s{sT0}, s{sT2}, s{sT0}")
            self.srd(RC, RA, f"s{sT0}", 4)
            e(f"buffer_load_dword v61, off, s[{RC}:{RC+3}], 0 nt")
        if o["dtouch"]:
            e(f"s_or_b32 s{sT0}, s2, s{sHW}")
            e("s_cbranch_scc1 L_nodt")
            self.srd(RC, sDBG, None, 256)
            e(f"buffer_load_dword v{vT}, off, s[{RC}:{RC+3}], 0 {o['dtouch']}")
            self.lab("L_nodt")
        e(f"s_and_b32 s{sU}, s2, {(2048 // ncl - 1) & ~7}")
        e(f"s_cselect_b32 s{sCLR}, 0x1000000, s{sCLR}")
        nst = 0 if o["noclear"] else -(-self.ws_bytes // (ncl * 4096))

        def marks():
            self.c("a few workgroups mark all hand-off slots empty; elsewhere these stores fall out of range")
            for k in range(nst):
                e(f"buffer_store_dwordx4 v[{vE}:{vE+3}], v{vEO}, s[{RD}:{RD+3}], s{sCLR} offen {o['pol_clr']}")
                e(f"s_add_u32 s{sCLR}, s{sCLR}, {ncl*4096}")
        if not o["late"]:
            if o["skipst"]:
                e("s_cbranch_scc1 L_nomarks")
            marks()
            self.lab("L_nomarks")
            nst = 0
        e(f"s_mul_i32 s{sT0}, s{sB}, 1152")
        self.srd(RA, sX, f"s{sT0}", 1152)
        e(f"s_lshl_b32 s{sT0}, s{sH}, 8")
        self.srd(RB, sWQ, f"s{sT0}", 0)
        e(f"s_sub_u32 s{RB+2}, {576*8192}, s{sT0}")
        e(f"v_lshrrev_b32 v{vS}, 4, v0")
        e(f"v_and_b32 v{vC}, 15, v0")
        self.c("x element of lane (s, c), register t: 64 t + 4 ((c + 4 hw) & 15) + s")
        e(f"s_lshl_b32 s{sT1}, s{sHW}, 2")
        e(f"v_add_u32 v{vXO}, s{sT1}, v{vC}")
        e(f"v_and_b32 v{vXO}, 15, v{vXO}")
        ws, wh, wc = [(1, 16, 4), (4, 16, 1), (16, 4, 1)][o["wqmap"]]
        if o["wqmap"] == 0:
            e(f"v_lshl_add_u32 v{vXO}, v{vXO}, 2, v{vS}")
        elif o["wqmap"] == 1:
            e(f"v_and_b32 v{vT}, 3, v{vXO}")
            e(f"v_lshrrev_b32 v{vXO}, 2, v{vXO}")
            e(f"v_lshl_add_u32 v{vXO}, v{vXO}, 2, v{vS}")
            e(f"v_lshl_add_u32 v{vXO}, v{vXO}, 2, v{vT}")
        else:
            e(f"v_lshl_add_u32 v{vXO}, v{vS}, 4, v{vXO}")
        e(f"v_lshlrev_b32 v{vXO}, 1, v{vXO}")
        self.c("register t covers block (t + b) mod 9")
        for t in range(9):
            if t == 0:
                e(f"s_lshl_b32 s{sROT}, s{sB}, 7" if o["rot"] else f"s_mov_b32 s{sROT}, 0")
            else:
                e(f"s_add_u32 s{sROT+t}, s{sROT+t-1}, 128")
                e(f"s_cmp_eq_u32 s{sROT+t}, {9*128}")
                e(f"s_cselect_b32 s{sROT+t}, 0, s{sROT+t}")
            if not o["nox"]:
                e(f"buffer_load_ushort v{vX+t}, v{vXO}, s[{RA}:{RA+3}], s{sROT+t} offen")
        e(f"v_lshlrev_b32 v{vWO}, {12 + ws.bit_length()}, v{vS}")
        e(f"v_lshl_add_u32 v{vWO}, v{vC}, 4, v{vWO}")
        e(f"s_lshl_b32 s{sT1}, s{sHW}, {12 + wh.bit_length()}")
        e(f"v_add_u32 v{vWO}, s{sT1}, v{vWO}")

        def wqload(n):
            t, cc = divmod(n, 4)
            e(f"s_lshl_b32 s{sOFF}, s{sROT+t}, 12" if cc == 0 else f"s_add_u32 s{sOFF}, s{sOFF}, {wc*8192}")
            if not o["nowq"]:
                e(f"buffer_load_dwordx4 v[{vW+4*n}:{vW+4*n+3}], v{vWO}, s[{RB}:{RB+3}], s{sOFF} offen {o['pol_wq']}")
        for n in range(dq):
            wqload(n)
        marks()
        self.masks(vM, vT, vU)
        e(f"s_mov_b32 s{sPLO}, 0x05040100")
        e(f"s_mov_b32 s{sPHI}, 0x07060302")
        e(f"s_mov_b32 s{sMSK}, 0")
        e(f"s_mov_b32 s{sMSK+1}, -1")
        e(f"s_waitcnt vmcnt({dq+nst})")
        self.stamp(1, vST)
        self.c("layer norm of row b")
        for t in range(9):
            e(f"v_lshlrev_b32 v{vX+t}, 16, v{vX+t}")
        e(f"v_add_f32 v{vMEAN}, v{vX}, v{vX+1}")
        for t in range(2, 9):
            e(f"v_add_f32 v{vMEAN}, v{vMEAN}, v{vX+t}")
        self.allreduce("v_add_f32", vMEAN, vT)
        e(f"v_mul_f32 v{vMEAN}, {f32(1/576)}, v{vMEAN}")
        for t in range(9):
            e(f"v_sub_f32 v{vD+t}, v{vX+t}, v{vMEAN}")
        e(f"v_mul_f32 v{vVAR}, v{vD}, v{vD}")
        for t in range(1, 9):
            e(f"v_fmac_f32 v{vVAR}, v{vD+t}, v{vD+t}")
        self.allreduce("v_add_f32", vVAR, vT)
        self.ln_finish(vMEAN, vVAR, vT)
        for t in range(9):
            e(f"v_sub_f32 v{vD+t}, v{vX+t}, v{vMEAN}")
        for t in range(9):
            e(f"v_cvt_pk_bf16_f32 v{vD+t}, v{vD+t}, v{vD+t}")
        for t in range(9):
            e(f"v_and_b32 v{vD+t}, 0xffff0000, v{vD+t}")
        for t in range(9):
            self.divide(vX + t, vD + t, vVAR, vT, vU)
        for t in range(9):
            e(f"v_cvt_pk_bf16_f32 v{vX+t}, v{vX+t}, v{vX+t}")
        for r in range(4):
            e(f"v_mov_b32 v{vACC+r}, 0")
        self.stamp(2, vST)

        def abuild(n):
            t, cc = divmod(n, 4)
            a = vA + 4 * (n & 1)
            for r in range(4):
                e(f"v_and_b32_dpp v{a+r}, v{vX+t}, v{vM+r} row_newbcast:{cc} row_mask:0xf bank_mask:0xf")
        abuild(0)
        issued = dq
        for n in range(36):
            a = vA + 4 * (n & 1)
            if n + 1 < 36:
                abuild(n + 1)
            else:
                e(f"v_and_b32 v{vT}, 1, v{vS}")
                e(f"v_lshlrev_b32 v{vT}, 4, v{vT}")
                e(f"v_lshl_add_u32 v{vT}, v{vC}, 5, v{vT}")
                e(f"s_lshl_b32 s{sT1}, s{sHW}, 9")
                e(f"v_add_u32 v{vT}, s{sT1}, v{vT}")
            e(f"s_waitcnt vmcnt({issued - n - 1 + (nst if n < dq else 0)})")
            e(f"v_mfma_f32_16x16x32_bf16 v[{vACC}:{vACC+3}], v[{a}:{a+3}], v[{vW+4*n}:{vW+4*n+3}], v[{vACC}:{vACC+3}]")
            while issued < min(36, n + 1 + (o["d_wq2"] if n >= o["n_wq2"] else dq)):
                wqload(issued)
                issued += 1
        e("s_nop 7")
        e(f"ds_write_b128 v{vT}, v[{vACC}:{vACC+3}] offset:{QP}")
        e(f"v_mov_b32 v{vU}, 64")
        e(f"ds_write_b32 v{vU}, v{vU} offset:{FL-64}")
        if o["fb"]:
            e(f"s_getreg_b32 s{sT1}, hwreg(HW_REG_XCC_ID)")
            e(f"s_bitcmp1_b32 s{sT1}, 0")
            e(f"s_cselect_b32 s{sMASK}, 0, {o['fb_even']}")
            e(f"s_bfm_b32 s{sT1}, s{sMASK}, 0")
            e(f"v_mov_b32 v{vMEAN}, 0")
            e(f"v_mov_b32 v{vVAR}, s{sT1}")
            e(f"ds_write_b32 v{vU}, v{vMEAN} offset:{PG-64}")
            e(f"ds_write_b32 v{vU}, v{vVAR} offset:{MD-64}")
        e(f"ds_write_b128 v{vU}, v[{vE}:{vE+3}] offset:{ST+16-64}")
        e("s_waitcnt lgkmcnt(0)")
        self.stamp(3, vST)
        e("s_barrier")
        self.stamp(4, vST)
        self.c("every wave drained its marking stores before the barrier: count this workgroup in")
        if o["stag"]:
            e(f"s_lshl_b32 s{sCLR}, s{sB}, 1")
            e(f"s_and_b32 s{sT0}, s2, 1")
            e(f"s_add_u32 s{sCLR}, s{sCLR}, s{sT0}")
            e(f"s_or_b32 s{sT0}, s{sU}, s{sHW}")
            e(f"s_cselect_b32 s{sCLR}, 99, s{sCLR}")
            e("s_branch L_nocount")
        e(f"s_or_b32 s{sT0}, s{sU}, s{sHW}")
        e("s_cbranch_scc1 L_nocount")
        if o["flag"]:
            self.srd(RC, sDBG, None, 256)
            e(f"s_lshr_b32 s{sT0}, s2, {(2048 // ncl).bit_length() - 1}")
            e(f"s_lshl_b32 s{sT0}, s{sT0}, 3")
            e(f"s_add_u32 s{sT0}, s{sT0}, s{sH}")
            e(f"s_lshl_b32 s{sT0}, s{sT0}, 2")
            e(f"v_lshlrev_b32 v{vT}, 8, v0")
            if not o["noat"]:
                e(f"buffer_store_dword v{vE}, v{vT}, s[{RC}:{RC+3}], s{sT0} offen sc1")
        elif o["vat"]:
            self.srd(RC, sDBG, None, 256)
            e(f"v_mov_b32 v{vU}, 1")
            e(f"v_lshlrev_b32 v{vMEAN}, 8, v0")
            e(f"buffer_atomic_add v{vU}, v{vMEAN}, s[{RC}:{RC+3}], 0 offen {o['vat'].replace('-', '')}")
        else:
            e(f"s_mov_b32 s{sT0}, 1")
            if not o["noat"]:
                e(f"s_atomic_add s{sT0}, s[{sDBG}:{sDBG+1}], 0")
            e("s_waitcnt lgkmcnt(0)")
        self.lab("L_nocount")

        vPO, vPO2 = 5, 6
        self.c("publish offsets: 512-B main region (lanes 0-31), 64-B tail region (lanes 0-15); other lanes out of range")
        e(f"s_mul_i32 s{sT0}, s2, 2304")
        e(f"s_lshl_b32 s{sT1}, s{sHW}, 9")
        e(f"s_add_u32 s{sT1}, s{sT1}, s{sT0}")
        e(f"v_and_b32 v{vPO}, 1, v{vS}")
        e(f"v_lshlrev_b32 v{vPO}, 4, v{vPO}")
        e(f"v_lshl_add_u32 v{vPO}, v{vC}, 5, v{vPO}")
        e(f"v_add_u32 v{vPO}, s{sT1}, v{vPO}")
        e(f"s_lshl_b32 s{sT1}, s{sHW}, 6")
        e(f"s_add_u32 s{sT1}, s{sT1}, s{sT0}")
        e(f"s_add_u32 s{sT1}, s{sT1}, 2048")
        e(f"v_lshlrev_b32 v{vPO2}, 2, v0")
        e(f"v_add_u32 v{vPO2}, s{sT1}, v{vPO2}")
        e(f"v_lshrrev_b32 v{vT}, 1, v{vS}")
        e(f"v_lshl_add_u32 v{vPO}, v{vT}, 24, v{vPO}")
        e(f"v_lshl_add_u32 v{vPO2}, v{vS}, 24, v{vPO2}")

        if o["pf"]:
            self.touch("1", sW1)
        if not o["nomlp"]:
            e(f"s_cmp_lg_u32 s{sHW}, 3")
            e("s_cbranch_scc1 L_nog1")
            e(f"s_lshr_b32 s{sU}, s2, 3")
            e(f"s_sub_u32 s{sU}, s{sU}, {o['g1']}")
            e(f"s_cmp_ge_u32 s{sU}, 9")
            e("s_cbranch_scc1 L_nog1")
            self.mlp1(vS, vC)
            self.lab("L_nog1")
        self.stamp(5, vST)

        self.c("wo rows of head h as B fragments: columns 128 hw .. +128 and 512 + 16 hw .. +16")
        vF = 112
        vL, vL2 = 64, 96
        vO1, vO2 = 3, 4
        e(f"s_mul_i32 s{sT0}, s{sH}, {128*1152}")
        self.srd(RB, sWO, f"s{sT0}", 128 * 1152)
        e(f"v_mul_u32_u24 v{vO2}, 9216, v{vS}")
        e(f"s_lshl_b32 s{sT1}, s{sHW}, 8")
        e(f"v_lshl_add_u32 v{vO1}, v{vC}, 4, v{vO2}")
        e(f"v_add_u32 v{vO1}, s{sT1}, v{vO1}")
        e(f"s_lshl_b32 s{sT1}, s{sHW}, 5")
        e(f"s_add_u32 s{sT1}, s{sT1}, 1024")
        e(f"v_lshl_add_u32 v{vO2}, v{vC}, 1, v{vO2}")
        e(f"v_add_u32 v{vO2}, s{sT1}, v{vO2}")
        for kb in range(0 if o["nowo"] else 4):
            for ee in range(8):
                if ee % 4 == 0:
                    if o["rot"]:
                        e(f"s_add_u32 s{sOFF}, s{sB}, {2*kb}")
                        e(f"s_and_b32 s{sOFF}, s{sOFF}, 6")
                        e(f"s_lshl_b32 s{sOFF}, s{sOFF}, 2")
                        e(f"s_and_b32 s{sT1}, s{sB}, 1")
                        e(f"s_xor_b32 s{sT1}, s{sT1}, {ee//4}")
                        e(f"s_add_u32 s{sOFF}, s{sOFF}, s{sT1}")
                        e(f"s_mul_i32 s{sOFF}, s{sOFF}, {4*1152}")
                    else:
                        e(f"s_mov_b32 s{sOFF}, {(32*kb+ee)*1152}")
                if ee >= o["d_wo"]:
                    e(f"s_waitcnt vmcnt({2*o['d_wo']-2})")
                if o["stag"] and kb < 2 and not o["noat"]:
                    e(f"s_cmp_lg_u32 s{sCLR}, {8*kb+ee}")
                    e(f"s_cbranch_scc1 L_nc{8*kb+ee}")
                    if o["vat"]:
                        self.srd(RC, sDBG, None, 256)
                        e(f"v_mov_b32 v{vU}, 1")
                        e(f"v_lshlrev_b32 v{vT}, 8, v0")
                        e(f"buffer_atomic_add v{vU}, v{vT}, s[{RC}:{RC+3}], 0 offen {o['vat'].replace('-', '')}")
                    else:
                        e(f"s_mov_b32 s{sT2}, 1")
                        e(f"s_atomic_add s{sT2}, s[{sDBG}:{sDBG+1}], 0")
                        e("s_waitcnt lgkmcnt(0)")
                    self.lab(f"L_nc{8*kb+ee}")
                e(f"buffer_load_dwordx4 v[{vL+4*ee}:{vL+4*ee+3}], v{vO1}, s[{RB}:{RB+3}], s{sOFF} offen offset:{(ee%4)*1152} {o['pol_wo']}")
                e(f"buffer_load_ushort v{vL2+ee}, v{vO2}, s[{RB}:{RB+3}], s{sOFF} offen offset:{(ee%4)*1152} {o['pol_wo']}")
            e("s_waitcnt vmcnt(0)")
            self.transpose(vF + 36 * kb, vL, 4)
            if o["pf"] == 2 and kb == 1:
                self.touch("2", sW2)
            for r in range(4):
                e(f"v_perm_b32 v{vF+36*kb+32+r}, v{vL2+2*r+1}, v{vL2+2*r}, s{sPLO}")
        if not o["nowo"]:
            self.wait_marked("mark", vT, vU)
        self.stamp(6, vST)

        if not o["nomlp"]:
            e(f"s_cmp_lg_u32 s{sHW}, 3")
            e("s_cbranch_scc1 L_nog2")
            e(f"s_lshr_b32 s{sU}, s2, 3")
            e(f"s_sub_u32 s{sU}, s{sU}, {o['g2']}")
            e(f"s_cmp_ge_u32 s{sU}, 9")
            e("s_cbranch_scc1 L_nog2")
            self.mlp2(vS, vC)
            self.lab("L_nog2")

        vG, vXV, vCOL, vPL = 7, 8, 9, 10
        e(f"s_cmp_lg_u32 s{sHW}, 0")
        e("s_cbranch_scc1 L_nopre")
        e(f"s_cmp_ge_u32 s{sH}, 18")
        e("s_cbranch_scc1 L_nopre")
        self.consumer_pre(vG, vXV, vCOL, vPL)
        self.lab("L_nopre")
        if o["fb"]:
            e(f"s_cmp_lg_u32 s{sHW}, 2")
            e("s_cbranch_scc1 L_nofb")
            if not o["fb_off"]:
                self.balance()
            self.lab("L_nofb")
        self.stamp(7, vST)

        vAO, vZ = 3, 4
        vAF = 64
        vMM, vLL = 80, 84
        vAC = 32
        vAC9 = 20
        vVAL = 88
        e(f"v_and_b32 v{vAO}, 3, v0")
        e(f"v_mul_u32_u24 v{vAO}, {OTS}, v{vAO}")
        e(f"v_lshl_add_u32 v{vAO}, v{vS}, 4, v{vAO}")
        e(f"v_mov_b32 v{vZ}, 0")
        if o["warm"]:
            self.c("first access to the workspace page from this CU, off the critical path; the value is not used")
            e(f"s_cmp_lg_u32 s{sHW}, 1")
            e("s_cbranch_scc1 L_nowarm")
            e(f"s_lshl_b32 s{sT0}, s2, 7")
            e(f"s_add_u32 s{sT0}, s{sT0}, {H_OFF}")
            e(f"buffer_load_dword v{vU}, off, s[{RD}:{RD+3}], s{sT0} sc1")
            e("s_waitcnt vmcnt(0)")
            self.lab("L_nowarm")
        self.c("softmax scale of each streamer's partial, once all four have posted max and sum")
        self.lab("L_st_poll")
        e(f"ds_read_b128 v[{vLL}:{vLL+3}], v{vZ} offset:{ST+16}")
        e(f"ds_read_b128 v[{vMM}:{vMM+3}], v{vZ} offset:{ST}")
        e("s_waitcnt lgkmcnt(0)")
        e(f"v_max_u32 v{vT}, v{vLL}, v{vLL+1}")
        e(f"v_max3_u32 v{vT}, v{vT}, v{vLL+2}, v{vLL+3}")
        e(f"v_cmp_eq_u32 vcc, -1, v{vT}")
        e("s_cbranch_vccz L_st_go")
        e("s_sleep 16")
        e("s_branch L_st_poll")
        self.lab("L_st_go")
        e(f"v_max_f32 v{vT}, v{vMM}, v{vMM+1}")
        e(f"v_max3_f32 v{vT}, v{vT}, v{vMM+2}, v{vMM+3}")
        for r in range(4):
            e(f"v_sub_f32 v{vMM+r}, v{vMM+r}, v{vT}")
        for r in range(4):
            e(f"v_mul_f32 v{vMM+r}, {f32(LOG2E)}, v{vMM+r}")
        for r in range(4):
            e(f"v_exp_f32 v{vMM+r}, v{vMM+r}")
        e("s_nop 0")
        e(f"v_mul_f32 v{vT}, v{vMM}, v{vLL}")
        for r in range(1, 4):
            e(f"v_fmac_f32 v{vT}, v{vMM+r}, v{vLL+r}")
        e(f"v_rcp_f32 v{vT}, v{vT}")
        e("s_nop 0")
        for r in range(4):
            e(f"v_mul_f32 v{vMM+r}, v{vMM+r}, v{vT}")
        e("s_mov_b32 vcc_lo, 0xffff0000")
        e("s_mov_b32 vcc_hi, 0xffff0000")
        e("s_setprio 3")
        e("s_barrier")
        self.stamp(8, vST)
        for kb in range(4):
            e(f"ds_read_b128 v[{vAF+4*kb}:{vAF+4*kb+3}], v{vAO} offset:{OT+64*kb}")
        acc = lambda u: (vAC + 4 * u) if u < 8 else vAC9
        self.c("rows r of each result belong to streamer r; lanes 16-31 keep columns u = 4..7")

        def finish(u):
            a = acc(u)
            v = vVAL + u if u < 4 else a
            ops = [f"v_mul_f32 v{v}, v{a}, v{vMM}"]
            ops += [f"v_fmac_f32 v{v}, v{a+r}, v{vMM+r}" for r in range(1, 4)]
            if u == 8:
                ops += [f"v_min_u32 v{v}, -2, v{v}",
                        f"buffer_store_dword v{v}, v{vPO2}, s[{RD}:{RD+3}], 0 offen {o['pol_pub']}"]
            elif u >= 4:
                ops += [f"v_cndmask_b32 v{vVAL+u-4}, v{vVAL+u-4}, v{v}, vcc",
                        f"v_min_u32 v{vVAL+u-4}, -2, v{vVAL+u-4}"]
            return ops
        queue = []
        slot = 0
        for i, u in enumerate([8, 0, 4, 1, 5, 2, 6, 3, 7]):
            for kb in range(4):
                if i == 0:
                    e(f"s_waitcnt lgkmcnt({3-kb})")
                a = acc(u)
                cin = "0" if kb == 0 else f"v[{a}:{a+3}]"
                f = vF + 36 * kb + 4 * u
                e(f"v_mfma_f32_16x16x32_bf16 v[{a}:{a+3}], v[{vAF+4*kb}:{vAF+4*kb+3}], v[{f}:{f+3}], {cin}")
                slot += 1
                last = slot
                for _ in range(2):
                    if queue and queue[0][0] <= slot:
                        e(queue.pop(0)[1])
                        slot += 1
            queue += [(last + 8, t) for t in finish(u)]
        while queue:
            if queue[0][0] > slot:
                e(f"s_nop {queue[0][0]-slot-1}")
                slot = queue[0][0]
            e(queue.pop(0)[1])
            slot += 1
        e(f"buffer_store_dwordx4 v[{vVAL}:{vVAL+3}], v{vPO}, s[{RD}:{RD+3}], 0 offen {o['pol_pub']}")
        self.stamp(9, vST)
        e(f"s_cmp_lg_u32 s{sHW}, 0")
        e("s_cbranch_scc1 L_hend")
        e(f"s_cmp_ge_u32 s{sH}, 18")
        e("s_cbranch_scc1 L_hend")
        self.consumer_final(vG, vXV, vCOL, vPL)
        self.lab("L_hend")
        self.stamp(10, vST)
        self.stamp_flush(vST, vT)
        if o["probe"] >= 0:
            e(f"s_cmp_lg_u32 s2, {o['probe_wg']}")
            e("s_cbranch_scc1 L_probe_end")
            e(f"s_cmp_lg_u32 s{sHW}, 0")
            e("s_cbranch_scc1 L_probe_end")
            if o["probe"] == 99:
                e("s_mov_b32 s78, s76")
            e("s_add_u32 s78, s78, 20000")
            self.lab("L_probe")
            e("s_memrealtime s[80:81]")
            e("s_waitcnt lgkmcnt(0)")
            e("s_sub_u32 s80, s80, s78")
            e("s_cmp_lt_i32 s80, 0")
            e("s_cbranch_scc1 L_probe")
            self.lab("L_probe_end")
        e("s_endpgm")

    def row_layout(self, vO, vLA, stride, t, u):
        e = self.e
        e(f"v_lshrrev_b32 v{t}, 3, v0")
        e(f"v_and_b32 v{u}, 7, v0")
        e(f"v_lshlrev_b32 v{u}, 4, v{u}")
        e(f"v_mul_u32_u24 v{vO}, {stride}, v{t}")
        e(f"v_add_u32 v{vO}, v{vO}, v{u}")
        e(f"v_mul_u32_u24 v{vLA}, {XTS}, v{t}")
        e(f"v_add_u32 v{vLA}, v{vLA}, v{u}")

    def gemm(self, name, vS, vC, stride):
        o = self.o
        e = self.e
        vO, vLA, vAC, vAF, vL, vF, vOUT = 3, 4, 32, 56, [64, 80], 96, 48
        e(f"v_mul_u32_u24 v{vO}, {8*stride}, v{vS}")
        e(f"v_lshl_add_u32 v{vO}, v{vC}, 3, v{vO}")
        e(f"v_and_b32 v{vLA}, 7, v0")
        e(f"v_mul_u32_u24 v{vLA}, {XTS}, v{vLA}")
        e(f"v_lshl_add_u32 v{vLA}, v{vS}, 4, v{vLA}")
        for k in range(16):
            e(f"v_mov_b32 v{vAC+k}, 0")
        e("s_waitcnt lgkmcnt(0)")

        def loads(buf):
            for ee in range(8):
                if o["d_mlp"] < 16:
                    e(f"s_waitcnt vmcnt({o['d_mlp']-1})")
                e(f"buffer_load_dwordx2 v[{vL[buf]+2*ee}:{vL[buf]+2*ee+1}], v{vO}, s[{RA}:{RA+3}], s{sOFF} offen {o['pol_mlp']}")
                e(f"s_add_u32 s{sOFF}, s{sOFF}, {stride if ee < 7 else 25*stride}")
        e(f"s_mov_b32 s{sOFF}, 0")
        loads(0)
        e(f"s_mov_b32 s{sCNT}, 9")
        self.lab(f"L_{name}")
        for half in range(2):
            loads(1 - half)
            e(f"ds_read_b128 v[{vAF}:{vAF+3}], v{vLA} offset:{XT+64*half}")
            e("s_waitcnt vmcnt(8)")
            self.transpose(vF, vL[half], 2)
            e("s_waitcnt lgkmcnt(0)")
            e("s_nop 0")
            for u in range(4):
                e(f"v_mfma_f32_16x16x32_bf16 v[{vAC+4*u}:{vAC+4*u+3}], v[{vAF}:{vAF+3}], v[{vF+4*u}:{vF+4*u+3}], v[{vAC+4*u}:{vAC+4*u+3}]")
        e(f"v_add_u32 v{vLA}, 128, v{vLA}")
        e(f"s_sub_u32 s{sCNT}, s{sCNT}, 1")
        e(f"s_cmp_lg_u32 s{sCNT}, 0")
        e(f"s_cbranch_scc1 L_{name}")
        e("s_waitcnt vmcnt(0)")
        e("s_nop 3")
        for rr in range(2):
            for u in range(4):
                e(f"v_cndmask_b32 v{vOUT+4*rr+u}, v{vAC+4*u+rr}, v{vAC+4*u+2+rr}, s[{sMSK}:{sMSK+1}]")

    def out_row(self, v, vS, t):
        e = self.e
        e(f"v_and_b32 v{v}, 1, v{vS}")
        e(f"v_lshlrev_b32 v{v}, 2, v{v}")
        e(f"v_and_b32 v{t}, 2, v{vS}")
        e(f"v_add_u32 v{v}, v{v}, v{t}")

    def mlp1(self, vS, vC):
        e = self.e
        vT, vU, vMEAN, vVAR, vV, vW, vRC = 24, 25, 26, 27, 28, 29, 30
        vO, vLA, vB1, vBB, vX, vOUT = 3, 4, 8, 12, 64, 48
        self.c("first MLP matrix, columns 64 u .. +64; layer norm of all rows first")
        e(f"s_and_b32 s{sT0}, s2, 7")
        e(f"s_mul_i32 s{sT0}, s{sT0}, 9")
        e(f"s_add_u32 s{sU}, s{sU}, s{sT0}")
        e(f"s_lshl_b32 s{sU}, s{sU}, 7")
        self.srd(RA, sX, None, 8 * 1152)
        self.row_layout(vO, vLA, 1152, vT, vU)
        for t in range(9):
            e(f"buffer_load_dwordx4 v[{vX+4*t}:{vX+4*t+3}], v{vO}, s[{RA}:{RA+3}], 0 offen offset:{128*t}")
        self.srd(RC, sB1, f"s{sU}", 128)
        e(f"v_lshlrev_b32 v{vU}, 3, v{vC}")
        e(f"buffer_load_dwordx2 v[{vB1}:{vB1+1}], v{vU}, s[{RC}:{RC+3}], 0 offen")
        e(f"v_mov_b32 v{vMEAN}, 0")
        e(f"v_mov_b32 v{vVAR}, 0")
        e("s_waitcnt vmcnt(0)")
        for k in range(36):
            e(f"v_lshlrev_b32 v{vT}, 16, v{vX+k}")
            e(f"v_and_b32 v{vU}, 0xffff0000, v{vX+k}")
            e(f"v_add_f32 v{vMEAN}, v{vMEAN}, v{vT}")
            e(f"v_add_f32 v{vVAR}, v{vVAR}, v{vU}")
        e(f"v_add_f32 v{vMEAN}, v{vMEAN}, v{vVAR}")

        def red8(v):
            for mod in ("quad_perm:[1,0,3,2]", "quad_perm:[2,3,0,1]", "row_half_mirror"):
                e("s_nop 1")
                e(f"v_add_f32_dpp v{v}, v{v}, v{v} {mod} row_mask:0xf bank_mask:0xf")
        red8(vMEAN)
        e(f"v_mul_f32 v{vMEAN}, {f32(1/576)}, v{vMEAN}")
        e(f"v_mov_b32 v{vVAR}, 0")
        for k in range(36):
            e(f"v_lshlrev_b32 v{vT}, 16, v{vX+k}")
            e(f"v_and_b32 v{vU}, 0xffff0000, v{vX+k}")
            e(f"v_sub_f32 v{vT}, v{vT}, v{vMEAN}")
            e(f"v_sub_f32 v{vU}, v{vU}, v{vMEAN}")
            e(f"v_fmac_f32 v{vVAR}, v{vT}, v{vT}")
            e(f"v_fmac_f32 v{vVAR}, v{vU}, v{vU}")
        red8(vVAR)
        self.ln_finish(vMEAN, vVAR, vRC)
        for k in range(36):
            e(f"v_lshlrev_b32 v{vT}, 16, v{vX+k}")
            e(f"v_and_b32 v{vU}, 0xffff0000, v{vX+k}")
            e(f"v_sub_f32 v{vT}, v{vT}, v{vMEAN}")
            e(f"v_sub_f32 v{vU}, v{vU}, v{vMEAN}")
            e(f"v_cvt_pk_bf16_f32 v{vU}, v{vT}, v{vU}")
            e(f"v_lshlrev_b32 v{vT}, 16, v{vU}")
            e(f"v_and_b32 v{vU}, 0xffff0000, v{vU}")
            self.divide(vV, vT, vVAR, vRC, vW)
            self.divide(vT, vU, vVAR, vRC, vW)
            e(f"v_cvt_pk_bf16_f32 v{vX+k}, v{vV}, v{vT}")
        for t in range(9):
            e(f"ds_write_b128 v{vLA}, v[{vX+4*t}:{vX+4*t+3}] offset:{XT+128*t}")
        self.stamp(11, 31)
        self.srd(RA, sW1, f"s{sU}", 0)
        e(f"s_sub_u32 s{RA+2}, {576*9216}, s{sU}")
        self.gemm("g1", vS, vC, 9216)
        self.c("bias, gelu, publish")
        e(f"v_lshlrev_b32 v{vBB}, 16, v{vB1}")
        e(f"v_and_b32 v{vBB+1}, 0xffff0000, v{vB1}")
        e(f"v_lshlrev_b32 v{vBB+2}, 16, v{vB1+1}")
        e(f"v_and_b32 v{vBB+3}, 0xffff0000, v{vB1+1}")
        c1 = -2.0 * 0.7978845608028654 * LOG2E
        e(f"s_mov_b32 s{sT2}, {f32(c1 * 0.044715)}")
        e(f"v_mov_b32 v{vW}, {f32(c1)}")
        for k in range(8):
            a = vOUT + k
            self.rbf(a, a)
            e(f"v_add_f32 v{a}, v{a}, v{vBB+k%4}")
            self.rbf(a, a)
            e(f"v_mul_f32 v{vT}, v{a}, v{a}")
            e(f"v_fma_f32 v{vT}, v{vT}, s{sT2}, v{vW}")
            e(f"v_mul_f32 v{vT}, v{vT}, v{a}")
            self.sigmoid_mul(a, a, vT, vU)
        for k in range(4):
            e(f"v_cvt_pk_bf16_f32 v{vOUT+k}, v{vOUT+2*k}, v{vOUT+2*k+1}")
            e(f"v_min_u32 v{vOUT+k}, -2, v{vOUT+k}")
        self.out_row(vT, vS, vU)
        e(f"v_mul_u32_u24 v{vT}, 9216, v{vT}")
        e(f"v_lshl_add_u32 v{vT}, v{vC}, 3, v{vT}")
        self.wait_marked("mark1", vV, vW)
        e(f"s_add_u32 s{sT0}, s{sU}, {H_OFF}")
        e(f"s_add_u32 s{sT1}, s{sU}, {H_OFF+9216}")
        e(f"buffer_store_dwordx2 v[{vOUT}:{vOUT+1}], v{vT}, s[{RD}:{RD+3}], s{sT0} offen {self.o['pol_hm']}")
        e(f"buffer_store_dwordx2 v[{vOUT+2}:{vOUT+3}], v{vT}, s[{RD}:{RD+3}], s{sT1} offen {self.o['pol_hm']}")

    def mlp2(self, vS, vC):
        e = self.e
        vT, vU = 24, 25
        vO, vLA, vX, vOUT = 3, 4, 64, 48
        self.c("second MLP matrix, rows 576 (id % 8) .. +576, columns 64 u .. +64")
        e(f"s_and_b32 s{sCLR}, s2, 7")
        self.row_layout(vO, vLA, 9216, vT, vU)
        e(f"s_mul_i32 s{sT0}, s{sCLR}, 1152")
        e(f"s_add_u32 s{sT0}, s{sT0}, {H_OFF}")

        def loads():
            for t in range(9):
                e(f"buffer_load_dwordx4 v[{vX+4*t}:{vX+4*t+3}], v{vO}, s[{RD}:{RD+3}], s{sT0} offen offset:{128*t} sc1")
        self.poll("h", loads, vX, 36, vT, 64, 0x10000)
        for t in range(9):
            e(f"ds_write_b128 v{vLA}, v[{vX+4*t}:{vX+4*t+3}] offset:{XT+128*t}")
        self.stamp(12, 31)
        e(f"s_lshl_b32 s{sU}, s{sU}, 7")
        e(f"s_mul_i32 s{sT0}, s{sCLR}, {576*1152}")
        e(f"s_add_u32 s{sT0}, s{sT0}, s{sU}")
        self.srd(RA, sW2, f"s{sT0}", 0)
        e(f"s_sub_u32 s{RA+2}, {576*1152}, s{sU}")
        self.gemm("g2", vS, vC, 1152)
        for k in range(8):
            e(f"v_min_u32 v{vOUT+k}, -2, v{vOUT+k}")
        self.out_row(vT, vS, vU)
        e(f"v_mul_u32_u24 v{vT}, 2304, v{vT}")
        e(f"v_lshl_add_u32 v{vT}, v{vC}, 4, v{vT}")
        e(f"s_mul_i32 s{sT0}, s{sCLR}, {8*2304}")
        e(f"s_lshl_b32 s{sU}, s{sU}, 1")
        e(f"s_add_u32 s{sT0}, s{sT0}, s{sU}")
        e(f"s_add_u32 s{sT0}, s{sT0}, {M_OFF}")
        e(f"buffer_store_dwordx4 v[{vOUT}:{vOUT+3}], v{vT}, s[{RD}:{RD+3}], s{sT0} offen {self.o['pol_hm']}")
        e(f"buffer_store_dwordx4 v[{vOUT+4}:{vOUT+7}], v{vT}, s[{RD}:{RD+3}], s{sT0} offen offset:2304 {self.o['pol_hm']}")
        self.stamp(13, 31)

    def balance(self):
        o = self.o
        e = self.e
        vT, vU, vZ, vSO = 24, 25, 26, 28
        ns, pub = o["fb_ns"], o["fb_pub"]
        sF, sA = 80, 36
        e(f"v_mov_b32 v{vZ}, 0")
        e(f"v_lshlrev_b32 v{vSO}, 24, v0")

        def waitprog(name, q):
            self.lab(name)
            e("s_sleep 1")
            e(f"ds_read_b32 v{vT}, v{vZ} offset:{PG}")
            e("s_waitcnt lgkmcnt(0)")
            e(f"v_readfirstlane_b32 s{sT0}, v{vT}")
            e(f"s_cmp_lt_u32 s{sT0}, {4*q+2}")
            e(f"s_cbranch_scc1 {name}")
        for r, spec in enumerate(o["fb"].split(","), 1):
            q, early, n0, gain = map(int, spec.split(":"))
            self.c("position in this round's order; the first ns of every ns * pub positions post, all of them look")
            e(f"s_and_b32 s{sT0}, s2, 7")
            e(f"s_mul_i32 s{sU}, s{sT0}, {24*r}")
            e(f"s_add_u32 s{sU}, s{sU}, s2")
            e(f"s_and_b32 s{sU}, s{sU}, 0xff")
            e(f"s_lshr_b32 s{sOFF}, s{sU}, {(ns*pub).bit_length() - 1}")
            e(f"s_mul_i32 s{sOFF}, s{sOFF}, {128*ns}")
            e(f"s_add_u32 s{sOFF}, s{sOFF}, {F_OFF + (r-1) * 256 // pub * 128}")
            e(f"s_and_b32 s{sU}, s{sU}, {ns*pub-1}")
            e(f"s_add_u32 s{sA}, s{sWS}, s{sOFF}")
            e(f"s_addc_u32 s{sA+1}, s{sWS+1}, 0")
            waitprog(f"L_fba{r}", q - early)
            for k in range(ns):
                e(f"s_load_dword s{sF+k}, s[{sA}:{sA+1}], {128*k} glc")
            e(f"s_mov_b32 s{sT0}, {ns}")
            e("s_waitcnt lgkmcnt(0)")
            for k in range(ns):
                e(f"s_add_u32 s{sT0}, s{sT0}, s{sF+k}")
            if o["stamps"]:
                e(f"v_writelane_b32 v31, s{sT0}, {32+r}")
            e(f"s_mov_b32 s{sT2}, s{sT0}")
            e(f"s_sub_i32 s{sT0}, s{sT0}, {n0}")
            e(f"s_max_i32 s{sT0}, s{sT0}, 0")
            e(f"s_min_i32 s{sT0}, s{sT0}, 64")
            e(f"s_mul_i32 s{sT0}, s{sT0}, {gain}")
            e(f"s_lshr_b32 s{sT0}, s{sT0}, 2")
            e(f"s_add_u32 s{sT0}, s{sT0}, s{sMASK}")
            e(f"s_min_u32 s{sT0}, s{sT0}, 31")
            e(f"s_bfm_b32 s{sT0}, s{sT0}, 0")
            e(f"v_mov_b32 v{vU}, s{sT0}")
            e(f"ds_write_b32 v{vZ}, v{vU} offset:{MD}")
            e(f"s_cmp_ge_u32 s{sT2}, {o['fb_skip']}")
            e(f"s_cbranch_scc1 L_fbc{r}")
            e(f"s_cmp_ge_u32 s{sU}, {ns}")
            e(f"s_cbranch_scc1 L_fbc{r}")
            e(f"s_lshl_b32 s{sU}, s{sU}, 7")
            e(f"s_add_u32 s{sU}, s{sU}, s{sOFF}")
            waitprog(f"L_fbb{r}", q)
            e(f"buffer_store_dword v{vZ}, v{vSO}, s[{RD}:{RD+3}], s{sU} offen sc1")
            self.lab(f"L_fbc{r}")

    def consumer_pre(self, vG, vXV, vCOL, vPL):
        e = self.e
        vT, vU, vCH, vGR, vMO = 24, 25, 26, 27, 28
        vB = 64
        self.c("this wave finishes 32 output columns of row b: line h of every partial")
        e(f"v_and_b32 v{vCH}, 7, v0")
        e(f"v_lshrrev_b32 v{vGR}, 3, v0")
        e(f"s_lshl_b32 s{sT0}, s{sH}, 5")
        e(f"v_lshlrev_b32 v{vCOL}, 2, v{vCH}")
        e(f"v_add_u32 v{vCOL}, s{sT0}, v{vCOL}")
        self.c("store offset: lanes 0-7 write four columns each, the rest fall out of range")
        e(f"v_lshlrev_b32 v{vPL+1}, 1, v{vCOL}")
        e(f"v_lshl_add_u32 v{vPL+1}, v{vGR}, 16, v{vPL+1}")
        e(f"v_mul_u32_u24 v{vMO}, {8*2304}, v{vGR}")
        e(f"v_lshl_add_u32 v{vMO}, v{vCOL}, 2, v{vMO}")
        e(f"v_mul_u32_u24 v{vPL}, 2304, v{vGR}")
        e(f"v_lshl_add_u32 v{vPL}, v{vCH}, 4, v{vPL}")
        e(f"s_mul_i32 s{sT0}, s{sB}, {32*2304}")
        e(f"s_lshl_b32 s{sT1}, s{sH}, 7")
        e(f"s_add_u32 s{sT0}, s{sT0}, s{sT1}")
        e(f"v_add_u32 v{vPL}, s{sT0}, v{vPL}")
        self.c("column of this lane after the reduction, in bytes of bf16")
        e(f"v_bfe_u32 v{vT}, v0, 5, 1")
        e(f"v_bfe_u32 v{vU}, v0, 4, 1")
        e(f"v_lshl_add_u32 v{vT}, v{vU}, 1, v{vT}")
        e(f"v_add_u32 v{vCOL}, v{vCOL}, v{vT}")
        e(f"v_lshlrev_b32 v{vCOL}, 1, v{vCOL}")
        e(f"s_mul_i32 s{sT0}, s{sB}, 1152")
        self.srd(RA, sX, f"s{sT0}", 1152)
        e(f"buffer_load_ushort v{vXV}, v{vCOL}, s[{RA}:{RA+3}], 0 offen")
        self.srd(RB, sB2, None, 1152)
        e(f"buffer_load_ushort v{vG}, v{vCOL}, s[{RB}:{RB+3}], 0 offen")
        self.srd(RA, sOUT, f"s{sT0}", 1152)
        if self.o["warm"]:
            self.c("first access to the output page, off the critical path; the value is not used")
            e(f"buffer_load_dword v{vB+8}, v{vPL+1}, s[{RA}:{RA+3}], 0 offen sc1")
        self.c("the MLP partials are fetched once the streamers are well into their V loop")
        e(f"v_mov_b32 v{vU}, 0")
        self.lab("L_mid_poll")
        e("s_sleep 16")
        e(f"ds_read_b32 v{vT}, v{vU} offset:{FL}")
        e("s_waitcnt lgkmcnt(0)")
        e(f"v_readfirstlane_b32 s{sT0}, v{vT}")
        e(f"s_cmp_gt_u32 s{sT0}, {self.o['fl_iter']}")
        e("s_cbranch_scc1 L_mid_poll")
        e(f"s_mul_i32 s{sT0}, s{sB}, 2304")
        e(f"s_add_u32 s{sT0}, s{sT0}, {M_OFF}")

        def loads():
            e(f"buffer_load_dwordx4 v[{vB}:{vB+3}], v{vMO}, s[{RD}:{RD+3}], s{sT0} offen sc1")
        self.poll("m", loads, vB, 4, vT, 64, 1 if self.o["nomlp"] else 0x10000)
        e(f"v_lshlrev_b32 v{vXV}, 16, v{vXV}")
        e(f"v_lshlrev_b32 v{vG}, 16, v{vG}")
        self.treduce(vB)
        self.rbf(vB, vB)
        e(f"v_add_f32 v{vB}, v{vB}, v{vG}")
        self.rbf(vB, vB)
        e(f"v_mul_f32 v{vT}, {f32(-LOG2E)}, v{vB}")
        self.sigmoid_mul(vG, vB, vT, vU)
        self.rbf(vG, vG)

    def consumer_final(self, vG, vXV, vCOL, vPL):
        e = self.e
        vB, vT = 64, 24
        for t in range(1, 4):
            e(f"s_mov_b32 s{sT0+t-1}, {8*t*2304}")

        def loads():
            for t in range(4):
                so = "0" if t == 0 else f"s{sT0+t-1}"
                e(f"buffer_load_dwordx4 v[{vB+4*t}:{vB+4*t+3}], v{vPL}, s[{RD}:{RD+3}], {so} offen {self.o['pol_fin']}")
        self.poll("fin", loads, vB, 16, vT, 0, 0x40000)
        for k in range(4):
            e(f"v_add_f32 v{vB+k}, v{vB+k}, v{vB+4+k}")
            e(f"v_add_f32 v{vB+8+k}, v{vB+8+k}, v{vB+12+k}")
        for k in range(4):
            e(f"v_add_f32 v{vB+k}, v{vB+k}, v{vB+8+k}")
        self.treduce(vB)
        self.rbf(vB, vB)
        e(f"v_mul_f32 v{vB}, v{vB}, v{vG}")
        self.rbf(vB, vB)
        e(f"v_add_f32 v{vB}, v{vB}, v{vXV}")
        if self.o["pack"]:
            e(f"v_mov_b32 v{vB+1}, v{vB}")
            e("s_nop 1")
            e(f"v_permlane32_swap_b32 v{vB}, v{vB+1}")
            e("s_nop 0")
            e(f"v_cvt_pk_bf16_f32 v{vB}, v{vB}, v{vB+1}")
            e(f"v_mov_b32 v{vB+1}, v{vB}")
            e("s_nop 1")
            e(f"v_permlane16_swap_b32 v{vB}, v{vB+1}")
            e("s_nop 0")
            e(f"buffer_store_dwordx2 v[{vB}:{vB+1}], v{vPL+1}, s[{RA}:{RA+3}], 0 offen {self.o['pol_out']}")
        else:
            e(f"v_cvt_pk_bf16_f32 v{vB}, v{vB}, v{vB}")
            e("s_mov_b32 exec_lo, 0x00ff00ff")
            e("s_mov_b32 exec_hi, 0x00ff00ff")
            e(f"buffer_store_short v{vB}, v{vCOL}, s[{RA}:{RA+3}], 0 offen {self.o['pol_out']}")
            e("s_mov_b64 exec, -1")

    def build(self, header):
        e = self.e
        self.L.extend(header)
        self.L.append(f"; @launch grid=(256,1,1) block=(512,1,1) lds={LDS_BYTES}")
        self.L.append('.amdgcn_target "amdgcn-amd-amdhsa--gfx950"')
        self.L.append(".text")
        self.L.append(f".globl {NAME}_kernel")
        self.L.append(".p2align 8")
        self.L.append(f".type {NAME}_kernel,@function")
        self.lab(f"{NAME}_kernel")
        if self.o["probe"] >= 0:
            e("s_memrealtime s[76:77]")
        e("s_load_dwordx16 s[8:23], s[0:1], 0")
        e("s_load_dwordx8 s[24:31], s[0:1], 64")
        e("s_load_dwordx2 s[32:33], s[0:1], 96")
        e("s_cmp_ge_u32 s2, 256")
        e("s_cbranch_scc1 L_exit")
        if self.o["hskew"]:
            e("s_bfe_u32 s5, s2, 0x20003")
            e(f"s_mul_i32 s5, s5, {self.o['hskew']}")
            e("s_add_u32 s5, s5, s2")
            e("s_and_b32 s5, s5, 7")
            e("s_and_b32 s2, s2, 0xf8")
            e("s_or_b32 s2, s2, s5")
        e("v_lshrrev_b32 v1, 6, v0")
        e("v_and_b32 v0, 63, v0")
        e(f"v_readfirstlane_b32 s{sWAVE}, v1")
        e(f"s_lshr_b32 s{sB}, s2, 5")
        e(f"s_and_b32 s{sH}, s2, 31")
        e(f"s_and_b32 s{sHW}, s{sWAVE}, 3")
        e(f"s_cmp_ge_u32 s{sWAVE}, 4")
        e("s_cbranch_scc1 L_helper")
        self.streamer()
        self.helper()
        self.lab("L_exit")
        e("s_endpgm")
        self.L.append('.section .rodata,"a"')
        self.L.append(".p2align 6")
        self.L.append(f".amdhsa_kernel {NAME}_kernel")
        for d in ("next_free_vgpr 256", "next_free_sgpr 96", "accum_offset 256",
                  "group_segment_fixed_size 0", "kernarg_size 104", "user_sgpr_count 2",
                  "user_sgpr_kernarg_segment_ptr 1", "system_sgpr_workgroup_id_x 1",
                  "float_denorm_mode_32 3"):
            self.L.append("  .amdhsa_" + d)
        self.L.append(".end_amdhsa_kernel")
        return "\n".join(self.L) + "\n"


def header():
    ref = open(f"cdna_kernels/{NAME}.s.ref").read().splitlines()
    return [l for l in ref if l.startswith(";") and "@launch" not in l]


def generate(**kw):
    return G(**kw).build(header())


if __name__ == "__main__":
    kw = {}
    out = f"cdna_kernels/{NAME}.s"
    for a in sys.argv[1:]:
        k, v = a.split("=", 1)
        if k == "out":
            out = v
        else:
            kw[k] = int(v) if v.lstrip("-").isdigit() else v
    open(out, "w").write(generate(**kw))
```
